```python
import torch

def _softmax(x, axis=-1):
    return torch.softmax(x, dim=axis)
def _gelu(x):
    return torch.nn.functional.gelu(x, approximate="tanh")
def _silu(x):
    return torch.nn.functional.silu(x)
def _sigmoid(x):
    return torch.sigmoid(x)
def _layernorm(x, axis=-1, eps=1e-5):
    m = x.mean(dim=axis, keepdim=True)
    v = x.var(dim=axis, keepdim=True, unbiased=False)
    return (x - m) / torch.sqrt(v + eps)
def _scatter_add(tgt, idx, src, axis=0):
    return tgt.clone().index_add_(axis, idx, src)
def _segment_sum(src, seg, n):
    out = torch.zeros((n,) + src.shape[1:], dtype=src.dtype)
    return out.index_add_(0, seg, src)
def _pad(x, pw):
    flat = tuple(v for pair in reversed(pw) for v in pair)
    return torch.nn.functional.pad(x, flat)

kernel_name = 'sequential_preLN__sliding_block_cached__geglu_ffn__decode'

def setup_inputs():

    _w = (lambda a: (lambda t: t.to(torch.bfloat16) if t.is_floating_point() else t)(torch.as_tensor(a)))
    def _A_setup():
        B, Sq, D = 4, 1, 512
        Hq, Hkv, Sk, Dh = 32, 8, 8192, 128
        assert Hq % Hkv == 0, (Hq, Hkv)
        return {
            "x": _w((lambda *s: torch.randn(*s, dtype=torch.bfloat16) * 0.05)(B, Sq, D)),
            "k_cache": _w((lambda *s: torch.randn(*s, dtype=torch.bfloat16) * 3.2)(B, Hkv, Sk, Dh)),
            "v_cache": _w((lambda *s: torch.randn(*s, dtype=torch.bfloat16) * 0.4)(B, Hkv, Sk, Dh)),
            "wq": _w((lambda *s: torch.randn(*s, dtype=torch.bfloat16) * 3.2)(D, Hq * Dh) * (D ** -0.5)),
            "wo": _w((lambda *s: torch.randn(*s, dtype=torch.bfloat16) * 0.4)(Hq * Dh, D) * ((Hq * Dh) ** -0.5)),
        }
    _A_in = _A_setup()

    def _B_setup():
        B, S, D, F = 4, 1, 512, 1792
        return {
            "x": _w((lambda *s: torch.randn(*s, dtype=torch.bfloat16) * 0.05)(B, S, D)),
            "w_gate": _w((lambda *s: torch.randn(*s, dtype=torch.bfloat16) * 0.05)(D, F)),
            "w_up": _w((lambda *s: torch.randn(*s, dtype=torch.bfloat16) * 0.05)(D, F)),
            "w_down": _w((lambda *s: torch.randn(*s, dtype=torch.bfloat16) * 0.05)(F, D)),
        }
    _B_in = _B_setup()

    return {
        "A_x": _A_in["x"],
        "A_k_cache": _A_in["k_cache"],
        "A_v_cache": _A_in["v_cache"],
        "A_wq": _A_in["wq"],
        "A_wo": _A_in["wo"],
        "B_x": _B_in["x"],
        "B_w_gate": _B_in["w_gate"],
        "B_w_up": _B_in["w_up"],
        "B_w_down": _B_in["w_down"],
    }

def reference(A_x, A_k_cache, A_v_cache, A_wq, A_wo, B_x, B_w_gate, B_w_up, B_w_down):
    def _A_ref(x, k_cache, v_cache, wq, wo):
        B, Sq, D = x.shape
        Hq, Dh = 32, 128
        Hkv, Sk = k_cache.shape[1], k_cache.shape[2]
        W = min(4096, max(256, Sk // 4))
        rep = Hq // Hkv
        q = (lambda x, *d: x.permute(*d))((x @ wq).reshape(B, Sq, Hq, Dh), 0, 2, 1, 3)
        k = (lambda x, n, axis: torch.repeat_interleave(x, n, dim=axis))(k_cache[:, :, Sk - W:, :], rep, axis=1)
        v = (lambda x, n, axis: torch.repeat_interleave(x, n, dim=axis))(v_cache[:, :, Sk - W:, :], rep, axis=1)
        scores = torch.einsum("bhqd,bhkd->bhqk", q, k) * (Dh ** -0.5)
        p = _softmax(scores, axis=-1)
        o = torch.einsum("bhqk,bhkd->bhqd", p, v)
        return (lambda x, *d: x.permute(*d))(o, 0, 2, 1, 3).reshape(B, Sq, Hq * Dh) @ wo

    def _B_ref(x, w_gate, w_up, w_down):
        return (_gelu(x @ w_gate) * (x @ w_up)) @ w_down

    x = A_x
    h = x + _A_ref(_layernorm(x, axis=-1), A_k_cache, A_v_cache, A_wq, A_wo)
    h2 = h + _B_ref(_layernorm(h, axis=-1), B_w_gate, B_w_up, B_w_down)
    return h2
```

```python
import re

REG = re.compile(r'^(v|s|a)(\d+)$')
RNG = re.compile(r'^(v|s|a)\[(\d+):(\d+)\]$')

def regs(tok):
    tok = tok.strip()
    neg = tok.lstrip('-')
    if neg.startswith('abs(') and neg.endswith(')'): neg = neg[4:-1]
    if neg.startswith('|') and neg.endswith('|'): neg = neg[1:-1]
    m = REG.match(neg)
    if m: return {(m.group(1), int(m.group(2)))}
    m = RNG.match(neg)
    if m: return {(m.group(1), i) for i in range(int(m.group(2)), int(m.group(3)) + 1)}
    if neg == 'vcc': return {('s', 'vcc')}
    if neg == 'm0': return {('s', 'm0')}
    if neg == 'exec': return {('s', 'exec')}
    return set()

TRANS = ('v_exp_f32', 'v_log_f32', 'v_rcp_f32', 'v_rsq_f32', 'v_sqrt_f32', 'v_sin_f32', 'v_cos_f32')

class I:
    def __init__(s, text):
        s.text = text
        t = text.split(';')[0].strip()
        s.label = t.endswith(':')
        s.empty = (t == '') or t.startswith('.')
        s.op = ''
        s.w = set(); s.r = set()
        s.kind = None
        s.dpp = False
        if s.label or s.empty: return
        parts = t.split(None, 1)
        s.op = parts[0]
        rest = parts[1] if len(parts) > 1 else ''
        ops = [o.strip() for o in rest.split(',')] if rest else []
        last_mods = ''
        if ops:
            sp = ops[-1].split(None, 1)
            ops[-1] = sp[0]
            last_mods = sp[1] if len(sp) > 1 else ''
        s.mods = last_mods
        op = s.op
        R = lambda idx: set().union(*[regs(ops[i]) for i in idx if i < len(ops)]) if idx else set()
        n = len(ops)
        if op.startswith('v_mfma'):
            s.kind = 'mfma'; s.w = R([0]); s.r = R([1, 2, 3]); s.ab = R([1, 2]); s.c = R([3])
        elif op.startswith('v_cmp'):
            s.kind = 'valu'; s.w = R([0]); s.r = R(range(1, n))
        elif op.startswith('v_readfirstlane') or op.startswith('v_readlane'):
            s.kind = 'valu'; s.w = R([0]); s.r = R(range(1, n)); s.lane_read = True
        elif op.startswith('v_writelane'):
            s.kind = 'valu'; s.w = R([0]); s.r = R(range(0, n))
        elif op.startswith('v_permlane'):
            s.kind = 'valu'; s.w = R([0, 1]); s.r = R([0, 1]); s.perm = True
        elif op.startswith('v_'):
            s.kind = 'valu'; s.w = R([0]); s.r = R(range(1, n))
            if op.startswith('v_fmac') or op.startswith('v_pk_fmac') or op.startswith('v_dot2c'): s.r |= s.w
            if op.startswith('v_cndmask') and n == 4: pass
            if op.startswith('v_add_co') or op.startswith('v_addc_co'):
                s.w = R([0, 1]); s.r = R(range(2, n))
            if 'row_' in last_mods or 'quad_perm' in last_mods or 'row_' in rest or 'quad_perm' in rest:
                s.dpp = True; s.r |= s.w
        elif op.startswith('ds_'):
            s.kind = 'ds'
            if op.startswith('ds_read') or op.startswith('ds_bpermute') or op.startswith('ds_permute') or op.startswith('ds_swizzle'):
                s.w = R([0]); s.r = R(range(1, n))
            else:
                s.r = R(range(0, n))
        elif op.startswith('global_load') or op.startswith('buffer_load'):
            s.kind = 'vmem'
            if ' lds' in (' ' + last_mods) or op.startswith('global_load_lds'):
                s.r = R(range(0, n)) | {('s', 'm0')}; s.ldsdma = True
            else:
                s.w = R([0]); s.r = R(range(1, n))
        elif op.startswith('global_store') or op.startswith('buffer_store') or op.startswith('global_atomic'):
            s.kind = 'vmem'; s.r = R(range(0, n)); s.store = True
            if op.startswith('global_store'): s.data = R([1])
            elif op.startswith('buffer_store'): s.data = R([0])
            else: s.data = set()
            s.wide = op.endswith('x4') or op.endswith('x3')
        elif op.startswith('s_'):
            s.kind = 'salu'
            if op.startswith(('s_cmp', 's_cbranch', 's_branch', 's_waitcnt', 's_nop', 's_barrier', 's_sleep', 's_endpgm', 's_setprio', 's_bitcmp')):
                s.r = R(range(0, n))
            else:
                s.w = R([0]); s.r = R(range(1, n))
                if 'saveexec' in op: s.w |= {('s', 'exec')}
        else:
            raise ValueError('unknown op: ' + text)

def nstates(ins):
    if ins.op == 's_nop':
        return int(ins.text.split(';')[0].split()[1], 0) + 1
    return 1

def need(prod, cons):
    v = lambda S: {x for x in S if x[0] in 'va'}
    sg = lambda S: {x for x in S if x[0] == 's'}
    n = 0
    if prod.kind == 'valu':
        pw = v(prod.w)
        if pw:
            if cons.kind == 'valu' and (cons.dpp or getattr(cons, 'perm', False)) and pw & v(cons.r): n = max(n, 2)
            if cons.kind == 'valu' and getattr(cons, 'lane_read', False) and pw & v(cons.r): n = max(n, 1)
            if cons.kind == 'mfma' and pw & v(cons.r): n = max(n, 2)
            if prod.op.startswith(TRANS) and cons.kind in ('valu', 'mfma', 'ds', 'vmem') and pw & v(cons.r): n = max(n, 1)
        ps = sg(prod.w)
        if ps:
            if cons.kind == 'valu' and ps & sg(cons.r):
                n = max(n, 4 if (cons.op.startswith('v_readlane') or cons.op.startswith('v_writelane')) else 2)
            if cons.kind == 'valu' and cons.op.startswith('v_cndmask') and ('s', 'vcc') in ps and not (sg(cons.r) - {('s', 'vcc')}): n = max(n, 2)
            if cons.kind == 'vmem' and ps & sg(cons.r): n = max(n, 5)
            if cons.kind in ('salu',) and ps & sg(cons.r) and not cons.op.startswith('s_cbranch'): n = max(n, 1)
    if prod.kind == 'mfma':
        d = v(prod.w)
        if cons.kind == 'mfma':
            if d & cons.ab: n = max(n, 8)
            if d & cons.c and not (d == cons.c): n = max(n, 6)
            if d & cons.w and not (d == cons.w): n = max(n, 8)
        elif cons.kind in ('valu', 'ds', 'vmem'):
            if d & (v(cons.r) | v(cons.w)): n = max(n, 8)
        if cons.kind == 'valu' and prod.c & v(cons.w): n = max(n, 3)
    if prod.kind == 'vmem' and getattr(prod, 'wide', False):
        if cons.kind == 'valu' and prod.data & v(cons.w): n = max(n, 2)
        elif cons.kind in ('ds', 'vmem') and prod.data & v(cons.w): n = max(n, 1)
    if prod.kind == 'salu' and ('s', 'm0') in prod.w:
        if getattr(cons, 'ldsdma', False): n = max(n, 1)
        if cons.kind == 'valu' and ('s', 'm0') in cons.r: n = max(n, 1)
    if prod.kind == 'salu' and ('s', 'exec') in prod.w:
        if cons.kind == 'valu' and cons.dpp: n = max(n, 1)
    return n

def implicit_vcc(ins):
    return

def fix(lines, verbose=False):
    out = []
    added = 0
    for ln in lines:
        ins = I(ln)
        if ins.label or ins.empty:
            out.append(ins); continue
        dist = 0; req = 0
        for p in reversed(out):
            if p.label or p.empty: continue
            k = need(p, ins)
            if k > dist: req = max(req, k - dist)
            dist += nstates(p)
            if dist >= 12: break
        if req > 0:
            out.append(I(f'    s_nop {req - 1}'))
            added += 1
            if verbose: print('nop', req, 'before', ln.strip())
        out.append(ins)
    return [i.text for i in out], added
```

```python
import sys, math
import hz

NAME = "sequential_preLN__sliding_block_cached__geglu_ffn__decode"
KN = NAME + "_kernel"

K_OFF, V_OFF, W_OFF = 0, 65536, 131072
XL = 147456
QL = XL + 5 * 1024
PL = QL + 4 * 272
OL = PL + 4 * 528
HL = OL + 4 * 272
ON32 = HL + 1024
GL = ON32 + 1024
XCH = GL + 320
FLG = XCH + 128
LDS_END = FLG + 64
assert LDS_END <= 163840
GATE_OFF, UP_OFF, DOWN_OFF = 0, 8192, 16384

QP, LSE, OP, HP, GP, CS, MO, DP = 0x10000, 0x52000, 0x80000, 0x100000, 0x140000, 0x1C0000, 0x1E0000, 0x200000
STAMP = 0x8000000

SCALE = 1.4426950408889634 * (128 ** -0.5)
GA = -2.0 * math.sqrt(2.0 / math.pi) * 1.4426950408889634
GB = GA * 0.044715

def f2u(x):
    import struct
    return struct.unpack('<I', struct.pack('<f', x))[0]

class G:
    def __init__(s, opt):
        s.l = []; s.opt = opt; s.uid = 0
    def __call__(s, t):
        for x in t.strip('\n').split('\n'):
            x = x.strip()
            if not x: continue
            s.l.append(x if x.endswith(':') else '    ' + x)
    def lab(s, p):
        s.uid += 1
        return f'L_{p}_{s.uid}'
    def stamp(s, i):
        if s.opt.get('stamps'): s(f's_memrealtime s[{72 + 2 * i}:{73 + 2 * i}]')

def build(opt):
    a = G(opt)
    W = opt.get('window', 28)
    LIMIT = opt.get('limit', 30000)
    ST_Q = opt.get('st_q', 'sc1')
    ST_A = opt.get('st_a', 'sc1')
    ST_B = 'sc1'
    ST_G = opt.get('st_g', 'sc1')
    ST_D = 'sc1'
    LD = 'sc1'
    NT = opt.get('nt', 'nt')

    sX_, sK_, sV_, sWQ_, sWO_, sWG_, sWU_, sWD_, sOUT, sWS = 4, 6, 8, 10, 12, 16, 18, 20, 22, 26
    sx, sy, shi, slo, swave, stag, sep, ssel = 28, 29, 30, 31, 32, 33, 34, 35
    vTid, vLane, vTag, vAcc = 0, 1, 2, 3

    def wait_progress(val, vt=4, vaddr=5):
        L = a.lab('wp')
        a(f'''
        {L}:
        ds_read_b32 v{vt}, v{vaddr}
        s_waitcnt lgkmcnt(0)
        v_readfirstlane_b32 s67, v{vt}
        s_cmp_ge_u32 s67, {val}
        s_cbranch_scc0 {L}
        ''')

    def wavesync(k, vt=4, vaddr=5, vone=6):
        L = a.lab('ws')
        a(f'''
        s_waitcnt lgkmcnt(0)
        s_mov_b64 exec, 1
        ds_add_u32 v{vaddr}, v{vone} offset:{16 + 4 * k}
        s_mov_b64 exec, -1
        {L}:
        ds_read_b32 v{vt}, v{vaddr} offset:{16 + 4 * k}
        s_waitcnt lgkmcnt(0)
        v_readfirstlane_b32 s67, v{vt}
        s_cmp_ge_u32 s67, 4
        s_cbranch_scc0 {L}
        ''')

    def tagcheck(rs, L):
        ok = L + '_ok'
        a(f'v_xor_b32 v{vAcc}, v{rs[0]}, v{vTag}')
        for r in rs[1:]:
            a(f'v_bitop3_b32 v{vAcc}, v{vAcc}, v{r}, v{vTag} bitop3:0xF6')
        a(f'''
        v_and_b32 v{vAcc}, 0xff, v{vAcc}
        v_cmp_ne_u32 vcc, 0, v{vAcc}
        s_cbranch_vccz {ok}
        s_add_u32 s66, s66, 1
        s_cmp_lt_u32 s66, {LIMIT}
        s_cbranch_scc1 {L}
        {ok}:
        ''')

    def tagput(rs):
        for r in rs:
            a(f'v_perm_b32 v{r}, v{r}, v{vTag}, s{ssel}')

    def xsum32(r, t):
        a(f'v_mov_b32 v{t}, v{r}\nv_permlane32_swap_b32 v{r}, v{t}\nv_add_f32 v{r}, v{r}, v{t}')
    def xsum16(r, t):
        a(f'v_mov_b32 v{t}, v{r}\nv_permlane16_swap_b32 v{r}, v{t}\nv_add_f32 v{r}, v{r}, v{t}')
    def xmax32(r, t):
        a(f'v_mov_b32 v{t}, v{r}\nv_permlane32_swap_b32 v{r}, v{t}\nv_max_f32 v{r}, v{r}, v{t}')
    def xmax16(r, t):
        a(f'v_mov_b32 v{t}, v{r}\nv_permlane16_swap_b32 v{r}, v{t}\nv_max_f32 v{r}, v{r}, v{t}')
    def multi(fn, rs, ts):
        op, perm = fn
        for r, t in zip(rs, ts): a(f'v_mov_b32 v{t}, v{r}')
        for r, t in zip(rs, ts): a(f'{perm} v{r}, v{t}')
        for r, t in zip(rs, ts): a(f'{op} v{r}, v{r}, v{t}')
    ADD32 = ('v_add_f32', 'v_permlane32_swap_b32'); ADD16 = ('v_add_f32', 'v_permlane16_swap_b32')
    def ror_add(rs, n):
        for r in rs: a(f'v_add_f32_dpp v{r}, v{r}, v{r} row_ror:{n} row_mask:0xf bank_mask:0xf')

    def srd(d, ptr, off_sgpr, size=None, total=None):
        if off_sgpr is None:
            a(f's_mov_b32 s{d}, s{ptr}\ns_mov_b32 s{d + 1}, s{ptr + 1}')
        else:
            a(f's_add_u32 s{d}, s{ptr}, s{off_sgpr}\ns_addc_u32 s{d + 1}, s{ptr + 1}, 0')
        if size is not None: a(f's_mov_b32 s{d + 2}, {size}')
        else: a(f's_sub_u32 s{d + 2}, {total}, s{off_sgpr}')
        a(f's_mov_b32 s{d + 3}, 0x20000')

    a(f'''
    s_cmp_ge_u32 s2, 256
    s_cbranch_scc1 L_end
    s_load_dwordx16 s[4:19], s[0:1], 0
    s_load_dwordx8 s[20:27], s[0:1], 64
    ''')
    if opt.get('stamps'):
        a('s_memrealtime s[72:73]')
        for i in range(1, 14): a(f's_mov_b64 s[{72 + 2 * i}:{73 + 2 * i}], 0')
    a(f'''
    v_and_b32 v{vLane}, 63, v0
    v_lshrrev_b32 v4, 6, v0
    s_and_b32 s{sx}, s2, 7
    v_readfirstlane_b32 s{swave}, v4
    s_lshr_b32 s{sy}, s2, 3
    s_lshr_b32 s{shi}, s{sy}, 3
    s_and_b32 s{slo}, s{sy}, 7
    s_mov_b32 s{ssel}, 0x07060500
    s_mov_b32 s66, 0
    s_waitcnt lgkmcnt(0)
    s_cmp_eq_u32 s{swave}, 7
    s_cbranch_scc1 L_loader
    s_load_dword s{sep}, s[{sWS}:{sWS + 1}], 0
    v_mov_b32 v5, {FLG}
    v_mov_b32 v6, 1
    s_cmp_lt_u32 s{swave}, 4
    s_cbranch_scc1 L_comp
    ''')
    a(f'''
    v_lshlrev_b32 v7, 4, v{vLane}
    s_cmp_eq_u32 s{swave}, 4
    s_cbranch_scc0 L_aux5
    v_mov_b32 v8, 0
    v_lshlrev_b32 v9, 2, v{vLane}
    v_add_u32 v9, {XCH}, v9
    v_cmp_gt_u32 vcc, 48, v{vLane}
    s_and_saveexec_b64 s[60:61], vcc
    ds_write_b32 v9, v8
    s_mov_b64 exec, s[60:61]
    s_branch L_aux_go
    L_aux5:
    s_cmp_eq_u32 s{swave}, 5
    s_cbranch_scc0 L_aux6
    v_mov_b32 v8, 0x3f803f80
    v_add_u32 v9, {XL + 4096}, v7
    s_branch L_aux_w
    L_aux6:
    v_mov_b32 v8, 1.0
    v_add_u32 v9, {ON32}, v7
    L_aux_w:
    v_mov_b32 v10, v8
    v_mov_b32 v11, v8
    v_mov_b32 v12, v8
    v_mov_b32 v13, v8
    ds_write_b128 v9, v[10:13]
    L_aux_go:
    s_waitcnt lgkmcnt(0)
    s_barrier
    s_cmp_eq_u32 s{swave}, 4
    s_cbranch_scc0 L_tail_entry
    ''')
    wait_progress(1)
    a(f'''
    v_and_b32 v7, 3, v{vLane}
    v_lshrrev_b32 v8, 2, v{vLane}
    v_lshlrev_b32 v7, 10, v7
    v_lshlrev_b32 v8, 3, v8
    s_lshl_b32 s36, s{slo}, 7
    s_add_u32 s36, s36, {XL}
    v_add3_u32 v7, v7, v8, s36
    ds_read_b64 v[8:9], v7
    v_lshlrev_b32 v7, 4, v{vLane}
    v_add_u32 v7, {HL}, v7
    s_waitcnt lgkmcnt(0)
    v_lshlrev_b32 v10, 16, v8
    v_and_b32 v11, 0xffff0000, v8
    v_lshlrev_b32 v12, 16, v9
    v_and_b32 v13, 0xffff0000, v9
    ds_write_b128 v7, v[10:13]
    s_waitcnt lgkmcnt(0)
    s_branch L_tail_entry
    ''')

    a('L_loader:')
    a.stamp(1)
    sSX, sSW, sSK, sSV = 36, 40, 44, 48
    srd(sSX, sX_, None, size=4096)
    a(f'''
    s_lshl_b32 s52, s{shi}, 20
    s_lshl_b32 s53, s{sx}, 10
    s_add_u32 s52, s52, s53
    s_lshl_b32 s53, s{slo}, 7
    s_add_u32 s52, s52, s53
    ''')
    srd(sSW, sWQ_, 52, total=4 << 20)
    a(f'''
    s_lshl_b32 s52, s{shi}, 3
    s_add_u32 s52, s52, s{sx}
    s_lshl_b32 s52, s52, 21
    s_lshl_b32 s53, s{slo}, 16
    s_add_u32 s52, s52, s53
    s_add_u32 s52, s52, {6144 * 256}
    ''')
    srd(sSK, sK_, 52, size=65536)
    srd(sSV, sV_, 52, size=65536)
    vL16, vWQ, vK, vV = 4, 6, 8, 12
    a(f'''
    v_lshlrev_b32 v{vL16}, 4, v{vLane}
    v_lshrrev_b32 v20, 3, v{vLane}
    v_and_b32 v21, 7, v{vLane}
    v_bfe_u32 v22, v{vLane}, 4, 1
    v_lshlrev_b32 v22, 1, v22
    v_lshlrev_b32 v20, 13, v20
    v_xor_b32 v23, v21, v22
    v_lshl_add_u32 v{vWQ}, v23, 4, v20
    v_xor_b32 v23, 4, v23
    v_lshl_add_u32 v{vWQ + 1}, v23, 4, v20
    v_lshrrev_b32 v20, 4, v{vLane}
    v_and_b32 v21, 15, v{vLane}
    v_lshlrev_b32 v22, 8, v20
    ''')
    for sub in range(4):
        a(f'''
        v_add_u32 v23, {4 * sub}, v20
        v_xor_b32 v23, v21, v23
        v_lshl_add_u32 v{vK + sub}, v23, 4, v22
        ''')
    for bit in range(2):
        a(f'''
        v_add_u32 v23, {4 * bit}, v20
        v_lshlrev_b32 v23, 1, v23
        v_xor_b32 v23, v21, v23
        v_lshl_add_u32 v{vV + bit}, v23, 4, v22
        ''')
    a(f'v_mov_b32 v16, {FLG}')
    seq = []
    for n in range(4): seq.append(('x', n))
    for n in range(16): seq.append(('wq', n))
    for n in range(64): seq.append(('K', n))
    for n in range(64): seq.append(('V', n))
    miles = {3: 1, 19: 2, 83: 3, 84 + 31: 4, 84 + 47: 5, 84 + 55: 6, 84 + 63: 7}
    def progress(val):
        a(f'v_mov_b32 v17, {val}\nds_write_b32 v16, v17')
    a(f's_lshl_b32 s54, s{slo}, 1')
    for idx, (kind, n) in enumerate(seq):
        if kind in 'KV' and n % 4 == 0:
            a(f's_add_u32 s55, s54, {n // 4}\ns_and_b32 s55, s55, 15\ns_lshl_b32 s55, s55, 12')
        if kind == 'x':
            a(f's_mov_b32 s56, {1024 * n}\ns_mov_b32 m0, {XL + 1024 * n}')
        elif kind == 'wq':
            a(f's_mov_b32 s56, {65536 * n}\ns_mov_b32 m0, {W_OFF + 1024 * n}')
        else:
            reg = K_OFF if kind == 'K' else V_OFF
            a(f's_add_u32 s56, s55, {1024 * (n % 4)}\ns_add_u32 m0, s56, {reg}')
        if idx >= W:
            a(f's_waitcnt vmcnt({W - 1})')
            if (idx - W) in miles: progress(miles[idx - W])
        if idx == W:
            a('s_waitcnt lgkmcnt(0)') if False else None
        if kind == 'x': a(f'buffer_load_dwordx4 v{vL16}, s[{sSX}:{sSX + 3}], s56 offen lds')
        elif kind == 'wq': a(f'buffer_load_dwordx4 v{vWQ + (n & 1)}, s[{sSW}:{sSW + 3}], s56 offen {NT} lds')
        elif kind == 'K': a(f'buffer_load_dwordx4 v{vK + (n % 4)}, s[{sSK}:{sSK + 3}], s56 offen {NT} lds')
        else: a(f'buffer_load_dwordx4 v{vV + ((n >> 1) & 1)}, s[{sSV}:{sSV + 3}], s56 offen {NT} lds')
        if idx == W - 1:
            a('s_barrier')
    last = len(seq) - 1
    for k in sorted(miles):
        if k + W > last:
            a(f's_waitcnt vmcnt({last - k})')
            progress(miles[k])
    a.stamp(2)
    a(f'''
    s_waitcnt lgkmcnt(0)
    s_load_dword s{sep}, s[{sWS}:{sWS + 1}], 0
    s_branch L_tail_entry
    ''')

    a('L_comp:')
    vCol, vG = 7, 8
    a(f'''
    v_and_b32 v{vCol}, 15, v{vLane}
    v_lshrrev_b32 v{vG}, 4, v{vLane}
    v_cmp_eq_u32 s[60:61], 1, v{vCol}
    v_cmp_eq_u32 s[62:63], 2, v{vCol}
    v_cmp_eq_u32 s[64:65], 3, v{vCol}
    v_min_u32 v9, 4, v{vCol}
    v_lshlrev_b32 v9, 10, v9
    v_lshl_add_u32 v9, v{vG}, 4, v9
    v_add_u32 v9, {XL}, v9
    s_barrier
    ''')
    vXB = 9
    vWT = 10
    a(f'''
    v_bfe_u32 v11, v{vLane}, 2, 2
    v_and_b32 v12, 3, v{vLane}
    v_lshl_add_u32 v13, v{vG}, 3, v11
    v_lshlrev_b32 v13, 7, v13
    v_lshrrev_b32 v14, 1, v11
    v_and_b32 v15, 1, v{vG}
    v_lshl_add_u32 v14, v15, 1, v14
    v_lshlrev_b32 v14, 1, v14
    v_lshrrev_b32 v15, 1, v12
    s_lshl_b32 s36, s{swave}, 1
    v_add_u32 v15, s36, v15
    v_xor_b32 v15, v15, v14
    v_lshl_add_u32 v13, v15, 4, v13
    v_and_b32 v12, 1, v12
    v_lshl_add_u32 v{vWT}, v12, 3, v13
    v_add_u32 v{vWT}, {W_OFF}, v{vWT}
    ''')
    wait_progress(1)
    a.stamp(1)
    vXo, vDg = 16, 80
    for t in range(16): a(f'ds_read_b128 v[{vXo + 4 * t}:{vXo + 4 * t + 3}], v{vXB} offset:{64 * t}')
    a(f'v_mov_b32 v{vDg}, 0\nv_mov_b32 v{vDg + 1}, 0\nv_mov_b32 v{vDg + 2}, 0\nv_mov_b32 v{vDg + 3}, 0')
    a('s_waitcnt lgkmcnt(0)')
    for t in range(16):
        a(f'v_mfma_f32_16x16x32_bf16 v[{vDg}:{vDg + 3}], v[{vXo + 4 * t}:{vXo + 4 * t + 3}], v[{vXo + 4 * t}:{vXo + 4 * t + 3}], v[{vDg}:{vDg + 3}]')
    a(f'''
    s_lshl_b32 s36, s{shi}, 8
    v_add_u32 v11, s36, v{vXB}
    ''')
    vXq = 16
    for t in range(4): a(f'ds_read_b128 v[{vXq + 4 * t}:{vXq + 4 * t + 3}], v11 offset:{64 * t}')
    vMu, vRs = 84, 85
    a(f'''
    v_cndmask_b32 v12, v{vDg}, v{vDg + 1}, s[60:61]
    v_cndmask_b32 v12, v12, v{vDg + 2}, s[62:63]
    v_cndmask_b32 v12, v12, v{vDg + 3}, s[64:65]
    v_and_b32 v13, 3, v{vLane}
    v_lshlrev_b32 v13, 2, v13
    v_add_u32 v14, 64, v13
    ds_bpermute_b32 v12, v13, v12
    ds_bpermute_b32 v15, v14, v{vDg}
    s_waitcnt lgkmcnt(0)
    v_mul_f32 v{vMu}, {1.0 / 512}, v15
    v_mul_f32 v12, {1.0 / 512}, v12
    v_fma_f32 v12, -v{vMu}, v{vMu}, v12
    v_add_f32 v12, 0x{f2u(1e-5):08x}, v12
    v_rsq_f32 v12, v12
    v_mul_f32 v{vRs}, 0x{f2u(SCALE):08x}, v12
    ''')
    wait_progress(2)
    a.stamp(2)
    vWa, vD = 32, 64
    for t in range(4):
        a(f'ds_read_b64_tr_b16 v[{vWa + 4 * t}:{vWa + 4 * t + 1}], v{vWT} offset:{4096 * t}')
        a(f'ds_read_b64_tr_b16 v[{vWa + 4 * t + 2}:{vWa + 4 * t + 3}], v{vWT} offset:{4096 * t + 512}')
    a(f'v_mov_b32 v{vD}, 0\nv_mov_b32 v{vD + 1}, 0\nv_mov_b32 v{vD + 2}, 0\nv_mov_b32 v{vD + 3}, 0')
    a('s_waitcnt lgkmcnt(0)')
    for t in range(4):
        a(f'v_mfma_f32_16x16x32_bf16 v[{vD}:{vD + 3}], v[{vWa + 4 * t}:{vWa + 4 * t + 3}], v[{vXq + 4 * t}:{vXq + 4 * t + 3}], v[{vD}:{vD + 3}]')
    a(f'''
    s_lshl_b32 s36, s{sx}, 15
    s_lshl_b32 s37, s{shi}, 11
    s_add_u32 s36, s36, s37
    s_lshl_b32 s37, s{slo}, 8
    s_add_u32 s36, s36, s37
    s_lshl_b32 s37, s{swave}, 6
    s_add_u32 s36, s36, s37
    s_add_u32 s36, s36, {QP}
    v_lshlrev_b32 v11, 13, v{vCol}
    v_lshl_add_u32 v11, v{vG}, 4, v11
    v_add_u32 v11, s36, v11
    s_add_u32 s{sep}, s{sep}, 1
    s_and_b32 s{stag}, s{sep}, 0xff
    v_mov_b32 v{vTag}, s{stag}
    ''')
    for r in range(4):
        a(f'v_mov_b32_dpp v{68 + r}, v{vD + r} row_newbcast:4 row_mask:0xf bank_mask:0xf')
    for r in range(4):
        a(f'v_fma_f32 v{vD + r}, -v{vMu}, v{68 + r}, v{vD + r}')
    for r in range(4):
        a(f'v_mul_f32 v{vD + r}, v{vRs}, v{vD + r}')
    tagput(range(vD, vD + 4))
    a(f'''
    v_cmp_gt_u32 vcc, 4, v{vCol}
    s_and_saveexec_b64 s[36:37], vcc
    global_store_dwordx4 v11, v[{vD}:{vD + 3}], s[{sWS}:{sWS + 1}] {ST_Q}
    s_mov_b64 exec, s[36:37]
    ''')
    a.stamp(3)
    a(f'''
    s_lshl_b32 s36, s{sx}, 15
    s_lshl_b32 s37, s{shi}, 13
    s_add_u32 s36, s36, s37
    s_lshl_b32 s37, s{swave}, 9
    s_add_u32 s36, s36, s37
    s_add_u32 s36, s36, {QP}
    v_lshrrev_b32 v11, 5, v{vLane}
    v_and_b32 v12, 31, v{vLane}
    v_lshlrev_b32 v11, 12, v11
    v_lshl_add_u32 v11, v12, 4, v11
    v_add_u32 v11, s36, v11
    ''')
    L = a.lab('gq')
    a(f'''
    {L}:
    global_load_dwordx4 v[16:19], v11, s[{sWS}:{sWS + 1}] {LD}
    global_load_dwordx4 v[20:23], v11, s[{sWS}:{sWS + 1}] offset:2048 {LD}
    s_waitcnt vmcnt(0)
    ''')
    tagcheck(list(range(16, 24)), L)
    a.stamp(4)
    for e in range(4): a(f'v_add_f32 v{16 + e}, v{16 + e}, v{20 + e}')
    multi(ADD32, range(16, 20), range(20, 24))
    a(f'''
    v_cvt_pk_bf16_f32 v16, v16, v17
    v_cvt_pk_bf16_f32 v17, v18, v19
    s_mul_i32 s36, s{swave}, 272
    s_add_u32 s36, s36, {QL}
    v_lshlrev_b32 v12, 3, v12
    v_add_u32 v12, s36, v12
    ds_write_b64 v12, v[16:17]
    ''')
    wavesync(0)
    vQ = 16
    a(f'''
    v_min_u32 v11, 3, v{vCol}
    v_mul_u32_u24 v12, 272, v11
    v_lshl_add_u32 v12, v{vG}, 4, v12
    v_add_u32 v12, {QL}, v12
    ''')
    for t in range(4): a(f'ds_read_b128 v[{vQ + 4 * t}:{vQ + 4 * t + 3}], v12 offset:{64 * t}')
    vKA = 32
    a(f'''
    s_lshl_b32 s36, s{swave}, 14
    v_lshlrev_b32 v13, 8, v{vCol}
    v_add_u32 v13, s36, v13
    ''')
    for t in range(4):
        a(f'''
        v_add_u32 v14, {4 * t}, v{vG}
        v_xor_b32 v14, v14, v{vCol}
        v_lshl_add_u32 v{vKA + t}, v14, 4, v13
        ''')
    wait_progress(3)
    a.stamp(5)
    vKo, vS = 96, 40
    for tile in range(4):
        for t in range(4):
            a(f'ds_read_b128 v[{vKo + 16 * tile + 4 * t}:{vKo + 16 * tile + 4 * t + 3}], v{vKA + t} offset:{4096 * tile}')
    for r in range(16): a(f'v_mov_b32 v{vS + r}, 0')
    a('s_waitcnt lgkmcnt(0)')
    for t in range(4):
        for tile in range(4):
            a(f'v_mfma_f32_16x16x32_bf16 v[{vS + 4 * tile}:{vS + 4 * tile + 3}], v[{vKo + 16 * tile + 4 * t}:{vKo + 16 * tile + 4 * t + 3}], v[{vQ + 4 * t}:{vQ + 4 * t + 3}], v[{vS + 4 * tile}:{vS + 4 * tile + 3}]')
    vM = 56
    a(f'v_max3_f32 v{vM}, v{vS}, v{vS + 1}, v{vS + 2}')
    for r in range(3, 15, 2): a(f'v_max3_f32 v{vM}, v{vM}, v{vS + r}, v{vS + r + 1}')
    a(f'v_max_f32 v{vM}, v{vM}, v{vS + 15}')
    xmax16(vM, 57); xmax32(vM, 57)
    vXA = 58
    a(f'''
    v_min_u32 v11, 3, v{vCol}
    v_lshlrev_b32 v{vXA}, 4, v11
    v_add_u32 v{vXA}, {XCH}, v{vXA}
    s_lshl_b32 s36, s{swave}, 2
    v_add_u32 v59, s36, v{vXA}
    v_cmp_gt_u32 vcc, 4, v{vLane}
    s_and_saveexec_b64 s[36:37], vcc
    ds_write_b32 v59, v{vM}
    s_mov_b64 exec, s[36:37]
    ''')
    wavesync(1)
    a(f'''
    ds_read_b128 v[60:63], v{vXA}
    s_waitcnt lgkmcnt(0)
    v_max3_f32 v{vM}, v60, v61, v62
    v_max_f32 v{vM}, v{vM}, v63
    ''')
    for r in range(16): a(f'v_sub_f32 v{vS + r}, v{vS + r}, v{vM}')
    for r in range(16): a(f'v_exp_f32 v{vS + r}, v{vS + r}')
    vL = 57
    a(f'v_add_f32 v{vL}, v{vS}, v{vS + 1}')
    for r in range(2, 16): a(f'v_add_f32 v{vL}, v{vL}, v{vS + r}')
    for r in range(8): a(f'v_cvt_pk_bf16_f32 v{64 + r}, v{vS + 2 * r}, v{vS + 2 * r + 1}')
    xsum16(vL, 60); xsum32(vL, 60)
    a(f'''
    v_mul_u32_u24 v61, 528, v11
    v_lshl_add_u32 v61, v{vG}, 3, v61
    s_lshl_b32 s36, s{swave}, 7
    s_add_u32 s36, s36, {PL}
    v_add_u32 v61, s36, v61
    v_cmp_gt_u32 vcc, 4, v{vCol}
    s_and_saveexec_b64 s[36:37], vcc
    ''')
    for tile in range(4): a(f'ds_write_b64 v61, v[{64 + 2 * tile}:{65 + 2 * tile}] offset:{32 * tile}')
    a(f'''
    s_mov_b64 exec, s[36:37]
    v_cmp_gt_u32 vcc, 4, v{vLane}
    s_and_saveexec_b64 s[36:37], vcc
    ds_write_b32 v59, v{vL} offset:64
    s_mov_b64 exec, s[36:37]
    ''')
    wavesync(2)
    a(f'''
    ds_read_b128 v[60:63], v{vXA} offset:64
    v_mul_u32_u24 v64, 528, v11
    v_lshl_add_u32 v64, v{vG}, 4, v64
    v_add_u32 v64, {PL}, v64
    ''')
    vP = 96
    for tau in range(8):
        a(f'''
        s_add_u32 s36, s{slo}, {tau}
        s_and_b32 s36, s36, 7
        s_lshl_b32 s36, s36, 6
        v_add_u32 v65, s36, v64
        ds_read_b128 v[{vP + 4 * tau}:{vP + 4 * tau + 3}], v65
        ''')
    vRL = 56
    a(f'''
    s_waitcnt lgkmcnt(0)
    v_add_f32 v60, v60, v61
    v_add_f32 v62, v62, v63
    v_add_f32 v60, v60, v62
    v_log_f32 v61, v60
    v_rcp_f32 v57, v60
    v_add_f32 v61, v61, v{vM}
    ''')
    vRL = 57
    a(f'''
    s_cmp_eq_u32 s{swave}, 0
    s_cbranch_scc0 L_nolse
    v_mov_b32_dpp v68, v61 quad_perm:[0,0,0,0] row_mask:0xf bank_mask:0xf
    v_mov_b32_dpp v69, v61 quad_perm:[1,1,1,1] row_mask:0xf bank_mask:0xf
    v_mov_b32_dpp v70, v61 quad_perm:[2,2,2,2] row_mask:0xf bank_mask:0xf
    v_mov_b32_dpp v71, v61 quad_perm:[3,3,3,3] row_mask:0xf bank_mask:0xf
    s_lshl_b32 s36, s{sx}, 9
    s_lshl_b32 s37, s{sy}, 4
    s_add_u32 s36, s36, s37
    s_add_u32 s36, s36, {LSE}
    v_mov_b32 v62, s36
    ''')
    tagput(range(68, 72))
    a(f'''
    s_mov_b64 exec, 1
    global_store_dwordx4 v62, v[68:71], s[{sWS}:{sWS + 1}] {ST_A}
    s_mov_b64 exec, -1
    L_nolse:
    ''')
    a.stamp(6)
    vVA = 72
    a(f'''
    v_bfe_u32 v11, v{vLane}, 2, 2
    v_and_b32 v12, 3, v{vLane}
    v_lshl_add_u32 v13, v{vG}, 3, v11
    v_lshlrev_b32 v13, 8, v13
    v_and_b32 v14, 1, v{vG}
    v_lshl_add_u32 v14, v14, 2, v11
    v_lshlrev_b32 v14, 1, v14
    v_lshrrev_b32 v15, 1, v12
    s_lshl_b32 s36, s{swave}, 2
    v_add_u32 v15, s36, v15
    v_and_b32 v12, 1, v12
    v_lshl_add_u32 v13, v12, 3, v13
    v_add_u32 v13, {V_OFF}, v13
    v_xor_b32 v12, v15, v14
    v_lshl_add_u32 v{vVA}, v12, 4, v13
    v_add_u32 v15, 2, v15
    v_xor_b32 v12, v15, v14
    v_lshl_add_u32 v{vVA + 1}, v12, 4, v13
    ''')
    vO = 76
    for r in range(8): a(f'v_mov_b32 v{vO + r}, 0')
    a(f'''
    s_lshl_b32 s36, s{sx}, 16
    s_lshl_b32 s37, s{sy}, 9
    s_add_u32 s36, s36, s37
    s_lshl_b32 s37, s{swave}, 7
    s_add_u32 s36, s36, s37
    s_add_u32 s36, s36, {OP}
    v_lshlrev_b32 v74, 14, v{vCol}
    v_lshl_add_u32 v74, v{vG}, 4, v74
    v_add_u32 v74, s36, v74
    ''')
    vVo = 128
    def pv(taus):
        for tau in taus:
            k = tau % 2
            base = vVo + 8 * (tau - taus[0])
            a(f'''
            s_add_u32 s36, s{slo}, {tau}
            s_and_b32 s36, s36, 7
            s_lshl_b32 s36, s36, 13
            v_add_u32 v14, s36, v{vVA}
            v_add_u32 v15, s36, v{vVA + 1}
            ds_read_b64_tr_b16 v[{base}:{base + 1}], v14
            ds_read_b64_tr_b16 v[{base + 2}:{base + 3}], v14 offset:1024
            ds_read_b64_tr_b16 v[{base + 4}:{base + 5}], v15
            ds_read_b64_tr_b16 v[{base + 6}:{base + 7}], v15 offset:1024
            ''')
        a('s_waitcnt lgkmcnt(0)')
        for tau in taus:
            base = vVo + 8 * (tau - taus[0])
            for dt in range(2):
                a(f'v_mfma_f32_16x16x32_bf16 v[{vO + 4 * dt}:{vO + 4 * dt + 3}], v[{base + 4 * dt}:{base + 4 * dt + 3}], v[{vP + 4 * tau}:{vP + 4 * tau + 3}], v[{vO + 4 * dt}:{vO + 4 * dt + 3}]')
    wait_progress(4); pv([0, 1, 2, 3])
    wait_progress(5); pv([4, 5])
    wait_progress(6); pv([6])
    wait_progress(7); a.stamp(7); pv([7])
    for r in range(8): a(f'v_mul_f32 v{vO + r}, v{vRL}, v{vO + r}')
    tagput(range(vO, vO + 8))
    a(f'''
    v_cmp_gt_u32 vcc, 4, v{vCol}
    s_and_saveexec_b64 s[36:37], vcc
    global_store_dwordx4 v74, v[{vO}:{vO + 3}], s[{sWS}:{sWS + 1}] {ST_A}
    global_store_dwordx4 v74, v[{vO + 4}:{vO + 7}], s[{sWS}:{sWS + 1}] offset:64 {ST_A}
    s_mov_b64 exec, s[36:37]
    ''')
    a.stamp(8)
    a(f'''
    s_lshl_b32 s40, s{sx}, 2
    s_add_u32 s40, s40, s{shi}
    s_lshl_b32 s41, s40, 17
    s_lshl_b32 s42, s{slo}, 7
    s_add_u32 s41, s41, s42
    ''')
    srd(44, sWO_, 41, total=4 << 20)
    a(f'''
    v_lshrrev_b32 v11, 3, v{vLane}
    v_and_b32 v12, 7, v{vLane}
    v_bfe_u32 v13, v{vLane}, 4, 1
    v_lshlrev_b32 v13, 1, v13
    v_xor_b32 v12, v12, v13
    v_lshlrev_b32 v11, 10, v11
    v_lshl_add_u32 v14, v12, 4, v11
    v_xor_b32 v12, 4, v12
    v_lshl_add_u32 v15, v12, 4, v11
    s_lshl_b32 s42, s{swave}, 15
    s_lshl_b32 s43, s{swave}, 12
    s_add_u32 s43, s43, {W_OFF}
    ''')
    for n in range(4):
        a(f'''
        s_add_u32 s48, s42, {8192 * n}
        s_add_u32 m0, s43, {1024 * n}
        buffer_load_dwordx4 v{14 + (n & 1)}, s[44:47], s48 offen {NT} lds
        ''')
    a(f'''
    s_lshl_b32 s41, s40, 14
    s_lshl_b32 s42, s{swave}, 7
    s_add_u32 s41, s41, s42
    s_add_u32 s41, s41, {OP}
    v_and_b32 v11, 7, v{vLane}
    v_bfe_u32 v12, v{vLane}, 3, 2
    v_lshrrev_b32 v13, 5, v{vLane}
    v_lshlrev_b32 v14, 12, v12
    v_lshl_add_u32 v14, v13, 11, v14
    v_lshl_add_u32 v14, v11, 4, v14
    v_add_u32 v14, s41, v14
    s_lshl_b32 s41, s{sx}, 9
    s_lshl_b32 s42, s{shi}, 2
    s_add_u32 s41, s41, s42
    s_add_u32 s41, s41, {LSE}
    v_lshlrev_b32 v15, 7, v12
    v_lshl_add_u32 v15, v13, 6, v15
    v_add_u32 v15, s41, v15
    ''')
    L = a.lab('ga')
    a(f'{L}:')
    for i in range(4): a(f'global_load_dword v{32 + i}, v15, s[{sWS}:{sWS + 1}] offset:{16 * i} {LD}')
    for i in range(4): a(f'global_load_dwordx4 v[{16 + 4 * i}:{19 + 4 * i}], v14, s[{sWS}:{sWS + 1}] offset:{512 * i} {LD}')
    a('s_waitcnt vmcnt(0)')
    tagcheck(list(range(16, 36)), L)
    a.stamp(9)
    a(f'''
    v_max3_f32 v36, v32, v33, v34
    v_max_f32 v36, v36, v35
    ''')
    xmax32(36, 37)
    for i in range(4): a(f'v_sub_f32 v{32 + i}, v{32 + i}, v36')
    for i in range(4): a(f'v_exp_f32 v{32 + i}, v{32 + i}')
    a('v_add_f32 v36, v32, v33\nv_add_f32 v37, v34, v35\nv_add_f32 v36, v36, v37')
    xsum32(36, 37)
    a('v_rcp_f32 v36, v36')
    for e in range(4): a(f'v_mul_f32 v{40 + e}, v32, v{16 + e}')
    for i in range(1, 4):
        for e in range(4): a(f'v_fmac_f32 v{40 + e}, v{32 + i}, v{16 + 4 * i + e}')
    multi(ADD32, range(40, 44), range(44, 48))
    for e in range(4): a(f'v_mul_f32 v{40 + e}, v36, v{40 + e}')
    a(f'''
    v_cvt_pk_bf16_f32 v40, v40, v41
    v_cvt_pk_bf16_f32 v41, v42, v43
    v_mul_u32_u24 v12, 272, v12
    v_lshl_add_u32 v12, v11, 3, v12
    s_lshl_b32 s41, s{swave}, 6
    s_add_u32 s41, s41, {OL}
    v_add_u32 v12, s41, v12
    ds_write_b64 v12, v[40:41]
    s_waitcnt lgkmcnt(0)
    ''')
    a('L_tail_entry:')
    a('s_barrier')
    a(f'''
    s_cmp_ge_u32 s{swave}, 4
    s_cbranch_scc1 L_s2_done
    ''')
    a(f'''
    v_min_u32 v11, 3, v{vCol}
    v_mul_u32_u24 v12, 272, v11
    v_lshl_add_u32 v12, v{vG}, 4, v12
    v_add_u32 v12, {OL}, v12
    ''')
    for t in range(4):
        a(f'ds_read_b64_tr_b16 v[{32 + 4 * t}:{33 + 4 * t}], v{vWT} offset:{4096 * t}')
        a(f'ds_read_b64_tr_b16 v[{34 + 4 * t}:{35 + 4 * t}], v{vWT} offset:{4096 * t + 512}')
        a(f'ds_read_b128 v[{16 + 4 * t}:{19 + 4 * t}], v12 offset:{64 * t}')
    a(f'''
    v_mov_b32 v64, 0
    v_mov_b32 v65, 0
    v_mov_b32 v66, 0
    v_mov_b32 v67, 0
    s_lshl_b32 s41, s{slo}, 15
    s_lshl_b32 s42, s40, 10
    s_add_u32 s41, s41, s42
    s_lshl_b32 s42, s{swave}, 8
    s_add_u32 s41, s41, s42
    s_add_u32 s41, s41, {HP}
    v_lshlrev_b32 v13, 4, v{vCol}
    v_lshl_add_u32 v13, v{vG}, 6, v13
    v_add_u32 v13, s41, v13
    s_waitcnt lgkmcnt(0)
    ''')
    for t in range(4):
        a(f'v_mfma_f32_16x16x32_bf16 v[64:67], v[{32 + 4 * t}:{35 + 4 * t}], v[{16 + 4 * t}:{19 + 4 * t}], v[64:67]')
    tagput(range(64, 68))
    a(f'''
    v_cmp_gt_u32 vcc, 4, v{vCol}
    s_and_saveexec_b64 s[36:37], vcc
    global_store_dwordx4 v13, v[64:67], s[{sWS}:{sWS + 1}] {ST_B}
    s_mov_b64 exec, s[36:37]
    ''')
    a.stamp(10)
    a('L_s2_done:')
    a(f'''
    s_cmp_lt_u32 s{swave}, 4
    s_cbranch_scc1 L_have_tag
    s_waitcnt lgkmcnt(0)
    s_add_u32 s{sep}, s{sep}, 1
    s_and_b32 s{stag}, s{sep}, 0xff
    v_mov_b32 v{vTag}, s{stag}
    v_and_b32 v{vCol}, 15, v{vLane}
    v_lshrrev_b32 v{vG}, 4, v{vLane}
    L_have_tag:
    s_lshl_b32 s40, s{shi}, 3
    s_add_u32 s40, s40, s{sx}
    s_cmp_ge_u32 s40, 28
    s_cbranch_scc1 L_final
    ''')
    a(f'''
    s_cmp_ge_u32 s{swave}, 4
    s_cbranch_scc1 L_nodma
    s_mul_i32 s41, s{slo}, {64 * 3584}
    s_lshl_b32 s42, s40, 7
    s_add_u32 s41, s41, s42
    ''')
    srd(44, sWG_, 41, total=512 * 3584)
    srd(48, sWU_, 41, total=512 * 3584)
    a(f'''
    s_lshr_b32 s42, s{sy}, 2
    s_and_b32 s42, s42, 1
    s_lshl_b32 s43, s40, 1
    s_add_u32 s43, s43, s42
    s_lshl_b32 s52, s43, 15
    s_and_b32 s53, s{sy}, 3
    s_lshl_b32 s53, s53, 8
    s_add_u32 s52, s52, s53
    ''')
    srd(56, sWD_, 52, total=1792 * 1024)
    a(f'''
    v_lshrrev_b32 v11, 3, v{vLane}
    v_and_b32 v12, 7, v{vLane}
    v_bfe_u32 v13, v{vLane}, 4, 1
    v_lshlrev_b32 v13, 1, v13
    v_xor_b32 v12, v12, v13
    v_mul_u32_u24 v11, 3584, v11
    v_lshl_add_u32 v14, v12, 4, v11
    v_xor_b32 v12, 4, v12
    v_lshl_add_u32 v15, v12, 4, v11
    s_mul_i32 s52, s{swave}, {16 * 3584}
    s_lshl_b32 s53, s{swave}, 11
    ''')
    for mat, (sr, off) in enumerate(((44, GATE_OFF), (48, UP_OFF))):
        for n in range(2):
            a(f'''
            s_add_u32 s54, s52, {8 * 3584 * n}
            s_add_u32 m0, s53, {off + 1024 * n}
            buffer_load_dwordx4 v{14 + n}, s[{sr}:{sr + 3}], s54 offen {NT} lds
            ''')
    a(f'''
    v_lshrrev_b32 v11, 4, v{vLane}
    v_and_b32 v12, 15, v{vLane}
    s_and_b32 s54, s{swave}, 1
    s_lshl_b32 s54, s54, 2
    v_add_u32 v13, s54, v11
    v_lshlrev_b32 v13, 1, v13
    v_xor_b32 v12, v12, v13
    v_lshlrev_b32 v11, 10, v11
    v_lshl_add_u32 v14, v12, 4, v11
    s_lshl_b32 s52, s{swave}, 13
    ''')
    for n in range(2):
        a(f'''
        s_add_u32 s54, s52, {4096 * n}
        s_add_u32 m0, s53, {DOWN_OFF + 1024 * n}
        buffer_load_dwordx4 v14, s[56:59], s54 offen {NT} lds
        ''')
    a('L_nodma:')
    a(f'''
    s_lshl_b32 s41, s{slo}, 15
    s_lshl_b32 s42, s{swave}, 12
    s_add_u32 s41, s41, s42
    s_add_u32 s41, s41, {HP}
    v_lshlrev_b32 v11, 4, v{vLane}
    v_add_u32 v12, s41, v11
    v_add_u32 v11, {HL}, v11
    ''')
    L = a.lab('gb')
    a(f'{L}:')
    for i in range(4): a(f'global_load_dwordx4 v[{16 + 4 * i}:{19 + 4 * i}], v12, s[{sWS}:{sWS + 1}] offset:{1024 * i} {LD}')
    a('s_waitcnt vmcnt(0)')
    tagcheck(list(range(16, 32)), L)
    a.stamp(11)
    for e in range(4): a(f'v_add_f32 v{16 + e}, v{16 + e}, v{20 + e}')
    for e in range(4): a(f'v_add_f32 v{24 + e}, v{24 + e}, v{28 + e}')
    for e in range(4): a(f'v_add_f32 v{16 + e}, v{16 + e}, v{24 + e}')
    for e in range(4): a(f'ds_add_f32 v11, v{16 + e} offset:{4 * e}')
    a(f'''
    v_bfe_u32 v20, v{vLane}, 2, 2
    v_and_b32 v21, 3, v{vLane}
    v_lshl_add_u32 v22, v{vG}, 3, v20
    v_lshlrev_b32 v22, 7, v22
    v_lshrrev_b32 v23, 1, v20
    v_and_b32 v24, 1, v{vG}
    v_lshl_add_u32 v23, v24, 1, v23
    v_lshlrev_b32 v23, 1, v23
    v_lshrrev_b32 v24, 1, v21
    s_and_b32 s41, s{swave}, 3
    s_lshl_b32 s42, s41, 1
    v_add_u32 v24, s42, v24
    v_xor_b32 v24, v24, v23
    v_lshl_add_u32 v22, v24, 4, v22
    v_and_b32 v21, 1, v21
    v_lshl_add_u32 v22, v21, 3, v22
    s_lshr_b32 s42, s{swave}, 2
    s_lshl_b32 s42, s42, 13
    v_add_u32 v22, s42, v22
    ''')
    a(f'''
    v_lshlrev_b32 v23, 7, v{vG}
    v_lshl_add_u32 v23, v{vCol}, 4, v23
    v_add_u32 v23, {HL}, v23
    v_mov_b32 v24, {ON32}
    v_cmp_gt_u32 vcc, 4, v{vCol}
    v_cndmask_b32 v23, v24, v23, vcc
    s_waitcnt lgkmcnt(0)
    s_barrier
    ''')
    for t in range(2):
        a(f'ds_read_b128 v[{32 + 8 * t}:{35 + 8 * t}], v23 offset:{512 * t}')
        a(f'ds_read_b128 v[{36 + 8 * t}:{39 + 8 * t}], v23 offset:{512 * t + 64}')
        a(f'ds_read_b64_tr_b16 v[{48 + 4 * t}:{49 + 4 * t}], v22 offset:{4096 * t}')
        a(f'ds_read_b64_tr_b16 v[{50 + 4 * t}:{51 + 4 * t}], v22 offset:{4096 * t + 512}')
    a(f'''
    s_lshr_b32 s42, s41, 1
    s_lshl_b32 s43, s40, 1
    s_add_u32 s43, s43, s42
    s_and_b32 s42, s41, 1
    s_lshl_b32 s42, s42, 2
    s_lshr_b32 s52, s{swave}, 2
    s_lshl_b32 s53, s43, 13
    s_lshl_b32 s54, s42, 10
    s_add_u32 s53, s53, s54
    s_lshl_b32 s54, s{slo}, 7
    s_add_u32 s53, s53, s54
    s_lshl_b32 s54, s52, 6
    s_add_u32 s53, s53, s54
    s_add_u32 s53, s53, {GP}
    v_lshlrev_b32 v25, 4, v{vCol}
    v_lshl_add_u32 v25, v{vG}, 10, v25
    v_add_u32 v25, s53, v25
    s_lshl_b32 s53, s43, 11
    s_lshl_b32 s54, s42, 8
    s_add_u32 s53, s53, s54
    s_lshl_b32 s54, s{slo}, 5
    s_add_u32 s53, s53, s54
    s_lshl_b32 s54, s52, 4
    s_add_u32 s53, s53, s54
    s_add_u32 s53, s53, {CS}
    v_lshlrev_b32 v26, 8, v{vG}
    v_add_u32 v26, s53, v26
    v_cmp_gt_u32 vcc, 4, v{vCol}
    v_cndmask_b32 v25, v26, v25, vcc
    v_mov_b32 v64, 0
    v_mov_b32 v65, 0
    v_mov_b32 v66, 0
    v_mov_b32 v67, 0
    s_waitcnt lgkmcnt(0)
    ''')
    for t in range(2):
        for h in range(4):
            a(f'v_cvt_pk_bf16_f32 v{56 + 4 * t + h}, v{32 + 8 * t + 2 * h}, v{33 + 8 * t + 2 * h}')
    for t in range(2):
        a(f'v_mfma_f32_16x16x32_bf16 v[64:67], v[{48 + 4 * t}:{51 + 4 * t}], v[{56 + 4 * t}:{59 + 4 * t}], v[64:67]')
    a(f'''
    s_cmp_eq_u32 s{swave}, 0
    s_cbranch_scc0 L_nomom
    v_mov_b32 v68, 0
    v_mov_b32 v69, 0
    v_mov_b32 v70, 0
    v_mov_b32 v71, 0
    ''')
    for t in range(2):
        a(f'v_mfma_f32_16x16x32_bf16 v[68:71], v[{56 + 4 * t}:{59 + 4 * t}], v[{56 + 4 * t}:{59 + 4 * t}], v[68:71]')
    a(f'''
    s_lshl_b32 s53, s40, 10
    s_lshl_b32 s54, s{slo}, 7
    s_add_u32 s53, s53, s54
    s_add_u32 s53, s53, {MO}
    v_lshlrev_b32 v27, 4, v{vCol}
    v_lshl_add_u32 v27, v{vG}, 6, v27
    v_add_u32 v27, s53, v27
    ''')
    tagput(range(68, 72))
    a(f'''
    v_cmp_gt_u32 vcc, 4, v{vCol}
    v_cmp_gt_u32 s[36:37], 32, v{vLane}
    s_and_b64 vcc, vcc, s[36:37]
    s_and_saveexec_b64 s[36:37], vcc
    global_store_dwordx4 v27, v[68:71], s[{sWS}:{sWS + 1}] {ST_G}
    s_mov_b64 exec, s[36:37]
    L_nomom:
    ''')
    tagput(range(64, 68))
    a(f'''
    v_cmp_gt_u32 vcc, 5, v{vCol}
    s_and_saveexec_b64 s[36:37], vcc
    global_store_dwordx4 v25, v[64:67], s[{sWS}:{sWS + 1}] {ST_G}
    s_mov_b64 exec, s[36:37]
    ''')
    a.stamp(12)
    a(f'''
    s_lshr_b32 s42, s{sy}, 2
    s_and_b32 s42, s42, 1
    s_lshl_b32 s43, s40, 1
    s_add_u32 s43, s43, s42
    s_lshl_b32 s52, s43, 13
    s_lshl_b32 s53, s{swave}, 10
    s_add_u32 s52, s52, s53
    s_add_u32 s52, s52, {GP}
    v_lshlrev_b32 v11, 4, v{vLane}
    v_add_u32 v11, s52, v11
    s_lshl_b32 s52, s43, 11
    s_lshl_b32 s53, s{swave}, 8
    s_add_u32 s52, s52, s53
    s_add_u32 s52, s52, {CS}
    v_lshrrev_b32 v12, 2, v{vLane}
    v_lshlrev_b32 v12, 4, v12
    v_add_u32 v12, s52, v12
    s_lshl_b32 s52, s40, 10
    s_add_u32 s52, s52, {MO}
    v_lshrrev_b32 v13, 3, v{vLane}
    v_and_b32 v14, 3, v{vLane}
    v_lshlrev_b32 v13, 7, v13
    v_lshl_add_u32 v13, v14, 4, v13
    v_add_u32 v13, s52, v13
    v_lshl_add_u32 v15, v14, 2, v13
    ''')
    a(f'''
    v_bfe_u32 v40, v{vLane}, 2, 2
    v_and_b32 v41, 3, v{vLane}
    v_lshl_add_u32 v42, v{vG}, 3, v40
    v_lshlrev_b32 v42, 8, v42
    v_and_b32 v43, 1, v{vG}
    v_lshl_add_u32 v43, v43, 2, v40
    v_lshlrev_b32 v43, 1, v43
    v_lshrrev_b32 v44, 1, v41
    s_lshl_b32 s52, s{swave}, 1
    v_add_u32 v44, s52, v44
    v_xor_b32 v44, v44, v43
    v_lshl_add_u32 v42, v44, 4, v42
    v_and_b32 v41, 1, v41
    v_lshl_add_u32 v42, v41, 3, v42
    ds_read_b64_tr_b16 v[48:49], v42 offset:{DOWN_OFF}
    ds_read_b64_tr_b16 v[50:51], v42 offset:{DOWN_OFF + 1024}
    ''')
    L = a.lab('gg')
    a(f'''
    {L}:
    global_load_dwordx4 v[16:19], v11, s[{sWS}:{sWS + 1}] {LD}
    global_load_dwordx4 v[20:23], v12, s[{sWS}:{sWS + 1}] {LD}
    global_load_dword v24, v13, s[{sWS}:{sWS + 1}] offset:64 {LD}
    global_load_dword v25, v15, s[{sWS}:{sWS + 1}] {LD}
    s_waitcnt vmcnt(0)
    ''')
    tagcheck(list(range(16, 26)), L)
    a.stamp(13)
    rs = list(range(16, 26))
    ror_add(rs, 8)
    multi(ADD16, rs, range(26, 36))
    multi(ADD32, rs, range(26, 36))
    a(f'''
    v_mul_f32 v24, {1.0 / 512}, v24
    v_mul_f32 v25, {1.0 / 512}, v25
    v_fma_f32 v25, -v24, v24, v25
    v_add_f32 v25, 0x{f2u(1e-5):08x}, v25
    v_rsq_f32 v25, v25
    ''')
    for e in range(4): a(f'v_fma_f32 v{16 + e}, -v24, v{20 + e}, v{16 + e}')
    a(f'''
    v_bfe_u32 v26, v{vLane}, 3, 2
    v_cmp_eq_u32 s[60:61], 1, v26
    v_cmp_eq_u32 s[62:63], 2, v26
    v_cmp_eq_u32 s[64:65], 3, v26
    v_cndmask_b32 v16, v16, v17, s[60:61]
    v_cndmask_b32 v16, v16, v18, s[62:63]
    v_cndmask_b32 v16, v16, v19, s[64:65]
    v_mul_f32 v16, v16, v25
    ''')
    a(f'''
    v_mov_b32_dpp v17, v16 row_half_mirror row_mask:0xf bank_mask:0xf
    v_mov_b32_dpp v17, v17 quad_perm:[3,2,1,0] row_mask:0xf bank_mask:0xf
    v_mul_f32 v18, v16, v16
    v_mov_b32 v19, 0x{f2u(GA):08x}
    v_fmac_f32 v19, 0x{f2u(GB):08x}, v18
    v_mul_f32 v19, v19, v16
    v_exp_f32 v19, v19
    v_add_f32 v19, 1.0, v19
    v_rcp_f32 v19, v19
    v_mul_f32 v19, v19, v16
    v_mul_f32 v19, v19, v17
    v_cvt_pk_bf16_f32 v19, v19, v19
    v_and_b32 v20, 3, v{vLane}
    v_mul_u32_u24 v20, 80, v20
    v_lshl_add_u32 v20, v26, 1, v20
    s_lshl_b32 s52, s{swave}, 3
    s_add_u32 s52, s52, {GL}
    v_add_u32 v20, s52, v20
    v_and_b32 v21, 0x24, v{vLane}
    v_cmp_eq_u32 vcc, 0, v21
    s_and_saveexec_b64 s[36:37], vcc
    ds_write_b16 v20, v19
    s_mov_b64 exec, s[36:37]
    v_min_u32 v21, 3, v{vCol}
    v_mul_u32_u24 v21, 80, v21
    v_lshl_add_u32 v21, v{vG}, 4, v21
    v_add_u32 v21, {GL}, v21
    ; DP + (m*56 + f)*2048 + (4w+g)*64 + b*16
    s_and_b32 s52, s{sy}, 3
    s_mul_i32 s52, s52, 56
    s_add_u32 s52, s52, s43
    s_lshl_b32 s52, s52, 11
    s_lshl_b32 s53, s{swave}, 8
    s_add_u32 s52, s52, s53
    s_add_u32 s52, s52, {DP}
    v_lshlrev_b32 v22, 4, v{vCol}
    v_lshl_add_u32 v22, v{vG}, 6, v22
    v_add_u32 v22, s52, v22
    v_mov_b32 v64, 0
    v_mov_b32 v65, 0
    v_mov_b32 v66, 0
    v_mov_b32 v67, 0
    s_waitcnt lgkmcnt(0)
    s_barrier
    ds_read_b128 v[32:35], v21
    s_waitcnt lgkmcnt(0)
    v_mfma_f32_16x16x32_bf16 v[64:67], v[48:51], v[32:35], v[64:67]
    ''')
    tagput(range(64, 68))
    a(f'''
    v_cmp_gt_u32 vcc, 4, v{vCol}
    s_and_saveexec_b64 s[36:37], vcc
    global_store_dwordx4 v22, v[64:67], s[{sWS}:{sWS + 1}] {ST_D}
    s_mov_b64 exec, s[36:37]
    s_branch L_fin
    ''')
    a(f'''
    L_final:
    s_cmp_ge_u32 s{swave}, 4
    s_cbranch_scc1 L_fin
    s_sub_u32 s41, s{sx}, 4
    s_lshl_b32 s41, s41, 3
    s_add_u32 s41, s41, s{slo}
    s_lshl_b32 s41, s41, 2
    s_add_u32 s41, s41, s{swave}
    s_lshr_b32 s42, s41, 4
    s_lshl_b32 s42, s42, 15
    s_and_b32 s43, s41, 15
    s_lshl_b32 s43, s43, 6
    s_add_u32 s42, s42, s43
    s_add_u32 s42, s42, {HP}
    v_lshrrev_b32 v11, 2, v{vLane}
    v_and_b32 v12, 3, v{vLane}
    v_lshlrev_b32 v13, 10, v11
    v_lshl_add_u32 v13, v12, 4, v13
    v_add_u32 v13, s42, v13
    v_add_u32 v14, 0x4000, v13
    s_lshl_b32 s43, s41, 3
    s_add_u32 s43, s43, {XL}
    v_lshlrev_b32 v15, 10, v12
    v_add_u32 v15, s43, v15
    ds_read_b64 v[40:41], v15
    ''')
    L = a.lab('gh')
    a(f'''
    {L}:
    global_load_dwordx4 v[16:19], v13, s[{sWS}:{sWS + 1}] {LD}
    global_load_dwordx4 v[20:23], v14, s[{sWS}:{sWS + 1}] {LD}
    s_waitcnt vmcnt(0)
    ''')
    tagcheck(list(range(16, 24)), L)
    a.stamp(11)
    for e in range(4): a(f'v_add_f32 v{44 + e}, v{16 + e}, v{20 + e}')
    a(f'''
    s_lshr_b32 s42, s41, 5
    s_mul_i32 s42, s42, {56 * 2048}
    s_and_b32 s43, s41, 31
    s_lshl_b32 s43, s43, 6
    s_add_u32 s42, s42, s43
    s_add_u32 s42, s42, {DP}
    v_lshlrev_b32 v13, 11, v11
    v_lshl_add_u32 v13, v12, 4, v13
    v_add_u32 v13, s42, v13
    v_add_u32 v14, 0x8000, v13
    v_add_u32 v15, 0x10000, v13
    v_add_u32 v32, 0x18000, v13
    v_cmp_gt_u32 s[60:61], 32, v{vLane}
    v_cndmask_b32 v32, v13, v32, s[60:61]
    v_cndmask_b32 v33, 0, 1.0, s[60:61]
    ''')
    L = a.lab('gd')
    a(f'''
    {L}:
    global_load_dwordx4 v[16:19], v13, s[{sWS}:{sWS + 1}] {LD}
    global_load_dwordx4 v[20:23], v14, s[{sWS}:{sWS + 1}] {LD}
    global_load_dwordx4 v[24:27], v15, s[{sWS}:{sWS + 1}] {LD}
    global_load_dwordx4 v[28:31], v32, s[{sWS}:{sWS + 1}] {LD}
    s_waitcnt vmcnt(0)
    ''')
    tagcheck(list(range(16, 32)), L)
    a.stamp(13)
    for e in range(4): a(f'v_add_f32 v{44 + e}, v{44 + e}, v{16 + e}')
    for e in range(4): a(f'v_add_f32 v{20 + e}, v{20 + e}, v{24 + e}')
    for e in range(4): a(f'v_fmac_f32 v{44 + e}, v33, v{28 + e}')
    for e in range(4): a(f'v_add_f32 v{44 + e}, v{44 + e}, v{20 + e}')
    rs = list(range(44, 48))
    ror_add(rs, 4); ror_add(rs, 8)
    multi(ADD16, rs, range(48, 52))
    multi(ADD32, rs, range(48, 52))
    a(f'''
    s_waitcnt lgkmcnt(0)
    v_lshlrev_b32 v48, 16, v40
    v_and_b32 v49, 0xffff0000, v40
    v_lshlrev_b32 v50, 16, v41
    v_and_b32 v51, 0xffff0000, v41
    ''')
    for e in range(4): a(f'v_add_f32 v{44 + e}, v{44 + e}, v{48 + e}')
    a(f'''
    v_cvt_pk_bf16_f32 v44, v44, v45
    v_cvt_pk_bf16_f32 v45, v46, v47
    s_lshl_b32 s42, s41, 3
    v_lshlrev_b32 v15, 10, v12
    v_add_u32 v15, s42, v15
    v_cmp_gt_u32 vcc, 4, v{vLane}
    s_and_saveexec_b64 s[36:37], vcc
    global_store_dwordx2 v15, v[44:45], s[{sOUT}:{sOUT + 1}]
    s_mov_b64 exec, s[36:37]
    s_cmp_eq_u32 s41, 0
    s_cbranch_scc0 L_fin
    v_mov_b32 v16, 0
    v_mov_b32 v17, s{sep}
    s_mov_b64 exec, 1
    global_store_dword v16, v17, s[{sWS}:{sWS + 1}] sc1
    s_mov_b64 exec, -1
    L_fin:
    ''')
    if opt.get('stamps'):
        a(f'''
        s_memrealtime s[100:101]
        s_waitcnt lgkmcnt(0)
        s_lshl_b32 s36, s2, 3
        s_add_u32 s36, s36, s{swave}
        s_lshl_b32 s36, s36, 7
        s_add_u32 s36, s36, {STAMP}
        v_mov_b32 v16, s36
        ''')
        for i in range(15):
            a(f'v_mov_b32 v18, s{72 + 2 * i}\nv_mov_b32 v19, s{73 + 2 * i}\nglobal_store_dwordx2 v16, v[18:19], s[{sWS}:{sWS + 1}] offset:{8 * i}\ns_nop 1')
        a(f'v_mov_b32 v18, s66\nv_mov_b32 v19, 0\nglobal_store_dwordx2 v16, v[18:19], s[{sWS}:{sWS + 1}] offset:120')
    a('L_end:\ns_endpgm')

    lines, added = hz.fix(a.l)
    hdr = f'''; @launch grid=(256,1,1) block=(512,1,1) lds=163840
.amdgcn_target "amdgcn-amd-amdhsa--gfx950"
.text
.globl {KN}
.p2align 8
.type {KN},@function
{KN}:
'''
    ftr = f'''
.section .rodata,"a"
.p2align 6
.amdhsa_kernel {KN}
  .amdhsa_next_free_vgpr 160
  .amdhsa_next_free_sgpr 102
  .amdhsa_accum_offset 160
  .amdhsa_group_segment_fixed_size 0
  .amdhsa_kernarg_size 96
  .amdhsa_user_sgpr_count 2
  .amdhsa_user_sgpr_kernarg_segment_ptr 1
  .amdhsa_system_sgpr_workgroup_id_x 1
.end_amdhsa_kernel
'''
    return hdr + '\n'.join(lines) + '\n' + ftr, added

if __name__ == '__main__':
    import argparse
    p = argparse.ArgumentParser()
    p.add_argument('-o', default='k.s'); p.add_argument('--stamps', action='store_true')
    p.add_argument('--opt', action='append', default=[])
    args = p.parse_args()
    opt = {'stamps': args.stamps}
    for o in args.opt:
        k, v = o.split('=', 1)
        try: v = int(v)
        except ValueError: pass
        opt[k] = v
    txt, added = build(opt)
    open(args.o, 'w').write(txt)
    print('wrote', args.o, 'lines', txt.count('\n'), 'nops added', added)
```

```python
import sys, math
import hz

NAME = "sequential_preLN__sliding_block_cached__geglu_ffn__decode"
KN = NAME + "_kernel"

K_OFF, V_OFF, W_OFF = 0, 65536, 131072
XL = 147456
QL = XL + 5 * 1024
PL = QL + 4 * 272
OL = PL + 4 * 528
HL = OL + 4 * 272
ZL = HL + 1024
ON32 = ZL
GL = ON32 + 1024
XCH = GL + 320
FLG = XCH + 128
LDS_END = FLG + 64
assert LDS_END <= 163840
GATE_OFF, UP_OFF, DOWN_OFF = 0, 8192, 16384

QP, LSE, OP, HP, GP, CS, MO, DP = 0x10000, 0x52000, 0x80000, 0x100000, 0x140000, 0x1C0000, 0x1E0000, 0x200000
STAMP = 0x8000000

SCALE = 1.4426950408889634 * (128 ** -0.5)
GA = -2.0 * math.sqrt(2.0 / math.pi) * 1.4426950408889634
GB = GA * 0.044715

def f2u(x):
    import struct
    return struct.unpack('<I', struct.pack('<f', x))[0]

class G:
    def __init__(s, opt):
        s.l = []; s.opt = opt; s.uid = 0
    def __call__(s, t):
        for x in t.strip('\n').split('\n'):
            x = x.strip()
            if not x: continue
            s.l.append(x if x.endswith(':') else '    ' + x)
    def lab(s, p):
        s.uid += 1
        return f'L_{p}_{s.uid}'
    def stamp(s, name):
        slots = s.opt.get('slots')
        if s.opt.get('stamps') and name in slots:
            i = slots.index(name) + 1
            s(f's_memrealtime s[{72 + 2 * i}:{73 + 2 * i}]')

def build(opt):
    a = G(opt)
    W = opt.get('window', 8)
    LIMIT = opt.get('limit', 30000)
    ST_Q = opt.get('st_q', 'sc1')
    ST_A = opt.get('st_a', 'sc1')
    ST_B = 'sc1'
    ST_G = 'sc1'
    ST_D = 'sc1'
    LD = 'sc1'
    NT = opt.get('nt', 'nt')

    sX_, sK_, sV_, sWQ_, sWO_, sWG_, sWU_, sWD_, sOUT, sWS = 4, 6, 8, 10, 12, 16, 18, 20, 22, 26
    sx, sy, shi, slo, swave, stag, sep, ssel = 28, 29, 30, 31, 32, 33, 34, 35
    vTid, vLane, vTag, vAcc = 0, 1, 2, 3

    def wait_progress(val, vt=4, vaddr=5):
        L = a.lab('wp')
        a(f'''
        {L}:
        ds_read_b128 v[88:91], v{vaddr}
        s_waitcnt lgkmcnt(0)
        v_min3_u32 v88, v88, v89, v90
        v_min_u32 v88, v88, v91
        v_readfirstlane_b32 s67, v88
        s_cmp_ge_u32 s67, {val}
        s_cbranch_scc0 {L}
        ''')

    def wavesync(k, vt=4, vaddr=5, vone=6):
        L = a.lab('ws')
        a(f'''
        s_waitcnt lgkmcnt(0)
        s_mov_b64 exec, 1
        ds_add_u32 v{vaddr}, v{vone} offset:{16 + 4 * k}
        s_mov_b64 exec, -1
        {L}:
        ds_read_b32 v{vt}, v{vaddr} offset:{16 + 4 * k}
        s_waitcnt lgkmcnt(0)
        v_readfirstlane_b32 s67, v{vt}
        s_cmp_ge_u32 s67, 4
        s_cbranch_scc0 {L}
        ''')

    def tagcheck(rs, L, sleep=0):
        ok = L + '_ok'
        a(f'v_xor_b32 v{vAcc}, v{rs[0]}, v{vTag}')
        for r in rs[1:]:
            a(f'v_bitop3_b32 v{vAcc}, v{vAcc}, v{r}, v{vTag} bitop3:0xF6')
        a(f'''
        v_and_b32 v{vAcc}, 0xff, v{vAcc}
        v_cmp_ne_u32 vcc, 0, v{vAcc}
        s_cbranch_vccz {ok}
        {('s_sleep ' + str(sleep)) if sleep else ''}
        s_add_u32 s66, s66, 1
        s_cmp_lt_u32 s66, {LIMIT}
        s_cbranch_scc1 {L}
        {ok}:
        ''')

    def tagput(rs):
        for r in rs:
            a(f'v_perm_b32 v{r}, v{r}, v{vTag}, s{ssel}')

    def xsum32(r, t):
        a(f'v_mov_b32 v{t}, v{r}\nv_permlane32_swap_b32 v{r}, v{t}\nv_add_f32 v{r}, v{r}, v{t}')
    def xsum16(r, t):
        a(f'v_mov_b32 v{t}, v{r}\nv_permlane16_swap_b32 v{r}, v{t}\nv_add_f32 v{r}, v{r}, v{t}')
    def xmax32(r, t):
        a(f'v_mov_b32 v{t}, v{r}\nv_permlane32_swap_b32 v{r}, v{t}\nv_max_f32 v{r}, v{r}, v{t}')
    def xmax16(r, t):
        a(f'v_mov_b32 v{t}, v{r}\nv_permlane16_swap_b32 v{r}, v{t}\nv_max_f32 v{r}, v{r}, v{t}')
    def multi(fn, rs, ts):
        op, perm = fn
        for r, t in zip(rs, ts): a(f'v_mov_b32 v{t}, v{r}')
        for r, t in zip(rs, ts): a(f'{perm} v{r}, v{t}')
        for r, t in zip(rs, ts): a(f'{op} v{r}, v{r}, v{t}')
    ADD32 = ('v_add_f32', 'v_permlane32_swap_b32'); ADD16 = ('v_add_f32', 'v_permlane16_swap_b32')
    def ror_add(rs, n):
        for r in rs: a(f'v_add_f32_dpp v{r}, v{r}, v{r} row_ror:{n} row_mask:0xf bank_mask:0xf')

    def srd(d, ptr, off_sgpr, size=None, total=None):
        if off_sgpr is None:
            a(f's_mov_b32 s{d}, s{ptr}\ns_mov_b32 s{d + 1}, s{ptr + 1}')
        else:
            a(f's_add_u32 s{d}, s{ptr}, s{off_sgpr}\ns_addc_u32 s{d + 1}, s{ptr + 1}, 0')
        if size is not None: a(f's_mov_b32 s{d + 2}, {size}')
        else: a(f's_sub_u32 s{d + 2}, {total}, s{off_sgpr}')
        a(f's_mov_b32 s{d + 3}, 0x20000')

    def gu_dma(vb):
        v0, v1, v2, v3, v4 = vb, vb + 1, vb + 2, vb + 3, vb + 4
        a(f"""
        s_mul_i32 s41, s{sx}, {64 * 3584}
        s_lshl_b32 s42, s{sy}, 7
        s_add_u32 s41, s41, s42
        """)
        srd(44, sWG_, 41, total=512 * 3584)
        srd(48, sWU_, 41, total=512 * 3584)
        a(f"""
        s_mul_i32 s52, s{sx}, 7
        s_lshr_b32 s53, s{sy}, 2
        s_add_u32 s52, s52, s53
        s_lshl_b32 s52, s52, 15
        s_and_b32 s53, s{sy}, 3
        s_lshl_b32 s53, s53, 8
        s_add_u32 s52, s52, s53
        """)
        srd(56, sWD_, 52, total=1792 * 1024)
        a(f"""
        v_lshrrev_b32 v{v0}, 3, v{vLane}
        v_and_b32 v{v1}, 7, v{vLane}
        v_bfe_u32 v{v2}, v{vLane}, 4, 1
        v_lshlrev_b32 v{v2}, 1, v{v2}
        v_xor_b32 v{v1}, v{v1}, v{v2}
        v_mul_u32_u24 v{v0}, 3584, v{v0}
        v_lshl_add_u32 v{v3}, v{v1}, 4, v{v0}
        v_xor_b32 v{v1}, 4, v{v1}
        v_lshl_add_u32 v{v4}, v{v1}, 4, v{v0}
        s_mul_i32 s52, s{swave}, {16 * 3584}
        s_lshl_b32 s53, s{swave}, 11
        """)
        for mat, (sr, off) in enumerate(((44, GATE_OFF), (48, UP_OFF))):
            for n in range(2):
                a(f"""
                s_add_u32 s54, s52, {8 * 3584 * n}
                s_add_u32 m0, s53, {off + 1024 * n}
                buffer_load_dwordx4 v{v3 + n}, s[{sr}:{sr + 3}], s54 offen {NT} lds
                """)
        a(f"""
        v_lshrrev_b32 v{v0}, 4, v{vLane}
        v_and_b32 v{v1}, 15, v{vLane}
        s_and_b32 s54, s{swave}, 1
        s_lshl_b32 s54, s54, 2
        v_add_u32 v{v2}, s54, v{v0}
        v_lshlrev_b32 v{v2}, 1, v{v2}
        v_xor_b32 v{v1}, v{v1}, v{v2}
        v_lshlrev_b32 v{v0}, 10, v{v0}
        v_lshl_add_u32 v{v3}, v{v1}, 4, v{v0}
        s_lshl_b32 s52, s{swave}, 13
        """)
        for n in range(2):
            a(f"""
            s_add_u32 s54, s52, {4096 * n}
            s_add_u32 m0, s53, {DOWN_OFF + 1024 * n}
            buffer_load_dwordx4 v{v3}, s[56:59], s54 offen {NT} lds
            """)

    a(f'''
    s_cmp_ge_u32 s2, 256
    s_cbranch_scc1 L_end
    s_load_dwordx16 s[4:19], s[0:1], 0
    s_load_dwordx8 s[20:27], s[0:1], 64
    ''')
    if opt.get('stamps'):
        a('s_memrealtime s[72:73]')
        for i in range(1, 14): a(f's_mov_b64 s[{72 + 2 * i}:{73 + 2 * i}], 0')
    a(f'''
    v_and_b32 v{vLane}, 63, v0
    v_lshrrev_b32 v4, 6, v0
    s_and_b32 s{sx}, s2, 7
    v_readfirstlane_b32 s{swave}, v4
    s_lshr_b32 s{sy}, s2, 3
    s_lshr_b32 s{shi}, s{sy}, 3
    s_and_b32 s{slo}, s{sy}, 7
    s_mov_b32 s{ssel}, 0x07060500
    s_mov_b32 s66, 0
    s_waitcnt lgkmcnt(0)
    s_cmp_ge_u32 s{swave}, 4
    s_cbranch_scc1 L_loader
    s_load_dword s{sep}, s[{sWS}:{sWS + 1}], 0
    v_mov_b32 v5, {FLG}
    v_mov_b32 v6, 1
    s_branch L_comp
    ''')
    a('L_loader:')
    a.stamp('ldr0')
    sSX, sSW, sSK, sSV, sj = 36, 40, 44, 48, 57
    a(f's_sub_u32 s{sj}, s{swave}, 4')
    srd(sSX, sX_, None, size=4096)
    a(f'''
    s_lshl_b32 s52, s{shi}, 20
    s_lshl_b32 s53, s{sx}, 10
    s_add_u32 s52, s52, s53
    s_lshl_b32 s53, s{slo}, 7
    s_add_u32 s52, s52, s53
    ''')
    srd(sSW, sWQ_, 52, total=4 << 20)
    a(f'''
    s_lshl_b32 s52, s{shi}, 3
    s_add_u32 s52, s52, s{sx}
    s_lshl_b32 s52, s52, 21
    s_lshl_b32 s53, s{slo}, 16
    s_add_u32 s52, s52, s53
    s_add_u32 s52, s52, {6144 * 256}
    ''')
    srd(sSK, sK_, 52, size=65536)
    srd(sSV, sV_, 52, size=65536)
    vL16, vWQ, vK, vV = 4, 6, 8, 9
    a(f'''
    v_lshlrev_b32 v{vL16}, 4, v{vLane}
    v_lshrrev_b32 v20, 3, v{vLane}
    v_and_b32 v21, 7, v{vLane}
    v_bfe_u32 v22, v{vLane}, 4, 1
    v_lshlrev_b32 v22, 1, v22
    v_lshlrev_b32 v20, 13, v20
    v_xor_b32 v23, v21, v22
    v_lshl_add_u32 v{vWQ}, v23, 4, v20
    v_xor_b32 v23, 4, v23
    v_lshl_add_u32 v{vWQ + 1}, v23, 4, v20
    v_lshrrev_b32 v20, 4, v{vLane}
    v_and_b32 v21, 15, v{vLane}
    v_lshlrev_b32 v22, 8, v20
    s_lshl_b32 s53, s{sj}, 2
    v_add_u32 v23, s53, v20
    v_xor_b32 v23, v21, v23
    v_lshl_add_u32 v{vK}, v23, 4, v22
    s_lshr_b32 s53, s{sj}, 1
    s_lshl_b32 s53, s53, 2
    v_add_u32 v23, s53, v20
    v_lshlrev_b32 v23, 1, v23
    v_xor_b32 v23, v21, v23
    v_lshl_add_u32 v{vV}, v23, 4, v22
    s_lshl_b32 s58, s{sj}, 10
    s_lshl_b32 s59, s{sj}, 2
    s_add_u32 s59, s59, {FLG}
    v_mov_b32 v16, s59
    s_lshl_b32 s54, s{slo}, 1
    ''')
    seq = [('x', 0)] + [('wq', n) for n in range(4)] + [('K', n) for n in range(16)] + [('V', n) for n in range(16)]
    miles = {0: 1, 4: 2, 20: 3, 21 + 7: 4, 21 + 11: 5, 21 + 13: 6, 21 + 15: 7}
    def progress(val):
        a(f'v_mov_b32 v17, {val}\nds_write_b32 v16, v17')
    def lds_init():
        a(f'''
        s_cmp_eq_u32 s{sj}, 0
        s_cbranch_scc0 L_aux5
        v_mov_b32 v18, 0
        v_lshlrev_b32 v19, 2, v{vLane}
        v_add_u32 v19, {XCH}, v19
        v_cmp_gt_u32 vcc, 48, v{vLane}
        s_and_saveexec_b64 s[60:61], vcc
        ds_write_b32 v19, v18
        s_mov_b64 exec, s[60:61]
        s_branch L_aux_go
        L_aux5:
        s_cmp_eq_u32 s{sj}, 3
        s_cbranch_scc1 L_aux_go
        v_mov_b32 v24, 0x3f803f80
        v_add_u32 v19, {XL + 4096}, v{vL16}
        s_cmp_eq_u32 s{sj}, 1
        s_cbranch_scc1 L_aux_w
        v_mov_b32 v24, 0
        v_add_u32 v19, {ZL}, v{vL16}
        L_aux_w:
        v_mov_b32 v25, v24
        v_mov_b32 v26, v24
        v_mov_b32 v27, v24
        ds_write_b128 v19, v[24:27]
        L_aux_go:
        s_waitcnt lgkmcnt(0)
        s_barrier
        ''')
    for idx, (kind, n) in enumerate(seq):
        if kind == 'x':
            a(f's_mov_b32 s56, s58\ns_add_u32 m0, s58, {XL}')
        elif kind == 'wq':
            a(f's_lshl_b32 s56, s{sj}, 16\ns_add_u32 s56, s56, {4 * 65536 * n}\ns_add_u32 m0, s58, {W_OFF + 4096 * n}')
        else:
            reg = K_OFF if kind == 'K' else V_OFF
            a(f's_add_u32 s55, s54, {n}\ns_and_b32 s55, s55, 15\ns_lshl_b32 s55, s55, 12\ns_add_u32 s56, s55, s58\ns_add_u32 m0, s56, {reg}')
        if idx >= W:
            a(f's_waitcnt vmcnt({W - 1})')
            if (idx - W) in miles: progress(miles[idx - W])
        if kind == 'x': a(f'buffer_load_dwordx4 v{vL16}, s[{sSX}:{sSX + 3}], s56 offen lds')
        elif kind == 'wq': a(f'buffer_load_dwordx4 v28, s[{sSW}:{sSW + 3}], s56 offen {NT} lds')
        elif kind == 'K': a(f'buffer_load_dwordx4 v{vK}, s[{sSK}:{sSK + 3}], s56 offen {NT} lds')
        else: a(f'buffer_load_dwordx4 v{vV}, s[{sSV}:{sSV + 3}], s56 offen {NT} lds')
        if idx == 0:
            a(f'''
            s_bitcmp1_b32 s{sj}, 0
            s_cselect_b64 s[60:61], -1, 0
            v_cndmask_b32 v28, v{vWQ}, v{vWQ + 1}, s[60:61]
            ''')
        if idx == W - 1:
            lds_init()
    last = len(seq) - 1
    for k in sorted(miles):
        if k + W > last:
            a(f's_waitcnt vmcnt({last - k})')
            progress(miles[k])
    a.stamp('ldrEnd')
    a(f'''
    s_waitcnt lgkmcnt(0)
    s_load_dword s{sep}, s[{sWS}:{sWS + 1}], 0
    s_branch L_tail_entry
    ''')

    a('L_comp:')
    vCol, vG = 7, 8
    a(f'''
    v_and_b32 v{vCol}, 15, v{vLane}
    v_lshrrev_b32 v{vG}, 4, v{vLane}
    v_cmp_eq_u32 s[60:61], 1, v{vCol}
    v_cmp_eq_u32 s[62:63], 2, v{vCol}
    v_cmp_eq_u32 s[64:65], 3, v{vCol}
    v_min_u32 v9, 4, v{vCol}
    v_lshlrev_b32 v9, 10, v9
    v_lshl_add_u32 v9, v{vG}, 4, v9
    v_add_u32 v9, {XL}, v9
    s_barrier
    ''')
    vXB = 9
    vWT = 10
    a(f'''
    v_bfe_u32 v11, v{vLane}, 2, 2
    v_and_b32 v12, 3, v{vLane}
    v_lshl_add_u32 v13, v{vG}, 3, v11
    v_lshlrev_b32 v13, 7, v13
    v_lshrrev_b32 v14, 1, v11
    v_and_b32 v15, 1, v{vG}
    v_lshl_add_u32 v14, v15, 1, v14
    v_lshlrev_b32 v14, 1, v14
    v_lshrrev_b32 v15, 1, v12
    s_lshl_b32 s36, s{swave}, 1
    v_add_u32 v15, s36, v15
    v_xor_b32 v15, v15, v14
    v_lshl_add_u32 v13, v15, 4, v13
    v_and_b32 v12, 1, v12
    v_lshl_add_u32 v{vWT}, v12, 3, v13
    v_add_u32 v{vWT}, {W_OFF}, v{vWT}
    ''')
    wait_progress(1)
    a.stamp('x')
    vXo, vDg = 16, 80
    for t in range(16): a(f'ds_read_b128 v[{vXo + 4 * t}:{vXo + 4 * t + 3}], v{vXB} offset:{64 * t}')
    a(f'v_mov_b32 v{vDg}, 0\nv_mov_b32 v{vDg + 1}, 0\nv_mov_b32 v{vDg + 2}, 0\nv_mov_b32 v{vDg + 3}, 0')
    a('s_waitcnt lgkmcnt(0)')
    for t in range(16):
        a(f'v_mfma_f32_16x16x32_bf16 v[{vDg}:{vDg + 3}], v[{vXo + 4 * t}:{vXo + 4 * t + 3}], v[{vXo + 4 * t}:{vXo + 4 * t + 3}], v[{vDg}:{vDg + 3}]')
    a(f'''
    s_lshl_b32 s36, s{shi}, 8
    v_add_u32 v11, s36, v{vXB}
    ''')
    vXq = 16
    for t in range(4): a(f'ds_read_b128 v[{vXq + 4 * t}:{vXq + 4 * t + 3}], v11 offset:{64 * t}')
    vMu, vRs = 84, 85
    a(f'''
    v_cndmask_b32 v12, v{vDg}, v{vDg + 1}, s[60:61]
    v_cndmask_b32 v12, v12, v{vDg + 2}, s[62:63]
    v_cndmask_b32 v12, v12, v{vDg + 3}, s[64:65]
    v_and_b32 v13, 3, v{vLane}
    v_lshlrev_b32 v13, 2, v13
    v_add_u32 v14, 64, v13
    ds_bpermute_b32 v12, v13, v12
    ds_bpermute_b32 v15, v14, v{vDg}
    s_waitcnt lgkmcnt(0)
    v_mul_f32 v{vMu}, {1.0 / 512}, v15
    v_mul_f32 v12, {1.0 / 512}, v12
    v_fma_f32 v12, -v{vMu}, v{vMu}, v12
    v_add_f32 v12, 0x{f2u(1e-5):08x}, v12
    v_rsq_f32 v12, v12
    v_mul_f32 v{vRs}, 0x{f2u(SCALE):08x}, v12
    ''')
    wait_progress(2)
    a.stamp('wq')
    vWa, vD = 32, 64
    for t in range(4):
        a(f'ds_read_b64_tr_b16 v[{vWa + 4 * t}:{vWa + 4 * t + 1}], v{vWT} offset:{4096 * t}')
        a(f'ds_read_b64_tr_b16 v[{vWa + 4 * t + 2}:{vWa + 4 * t + 3}], v{vWT} offset:{4096 * t + 512}')
    a(f'v_mov_b32 v{vD}, 0\nv_mov_b32 v{vD + 1}, 0\nv_mov_b32 v{vD + 2}, 0\nv_mov_b32 v{vD + 3}, 0')
    a('s_waitcnt lgkmcnt(0)')
    for t in range(4):
        a(f'v_mfma_f32_16x16x32_bf16 v[{vD}:{vD + 3}], v[{vWa + 4 * t}:{vWa + 4 * t + 3}], v[{vXq + 4 * t}:{vXq + 4 * t + 3}], v[{vD}:{vD + 3}]')
    a(f'''
    s_lshl_b32 s36, s{sx}, 15
    s_lshl_b32 s37, s{shi}, 11
    s_add_u32 s36, s36, s37
    s_lshl_b32 s37, s{slo}, 8
    s_add_u32 s36, s36, s37
    s_lshl_b32 s37, s{swave}, 6
    s_add_u32 s36, s36, s37
    s_add_u32 s36, s36, {QP}
    v_lshlrev_b32 v11, 13, v{vCol}
    v_lshl_add_u32 v11, v{vG}, 4, v11
    v_add_u32 v11, s36, v11
    s_add_u32 s{sep}, s{sep}, 1
    s_and_b32 s{stag}, s{sep}, 0xff
    s_xor_b32 s37, s{stag}, 0x80
    v_mov_b32 v{vTag}, s37
    ''')
    for r in range(4):
        a(f'v_mov_b32_dpp v{68 + r}, v{vD + r} row_newbcast:4 row_mask:0xf bank_mask:0xf')
    for r in range(4):
        a(f'v_fma_f32 v{vD + r}, -v{vMu}, v{68 + r}, v{vD + r}')
    for r in range(4):
        a(f'v_mul_f32 v{vD + r}, v{vRs}, v{vD + r}')
    tagput(range(vD, vD + 4))
    a(f'''
    v_cmp_gt_u32 vcc, 4, v{vCol}
    s_and_saveexec_b64 s[36:37], vcc
    global_store_dwordx4 v11, v[{vD}:{vD + 3}], s[{sWS}:{sWS + 1}] {ST_Q}
    s_mov_b64 exec, s[36:37]
    ''')
    a.stamp('qpub')
    if opt.get('touch', 1):
        a(f'''
        s_cmp_eq_u32 s{swave}, 0
        s_cbranch_scc0 L_notouch
        s_lshl_b32 s36, s{sx}, 2
        s_add_u32 s36, s36, s{shi}
        s_lshl_b32 s36, s36, 14
        s_lshl_b32 s37, s{slo}, 11
        s_add_u32 s36, s36, s37
        s_add_u32 s36, s36, {OP}
        v_lshlrev_b32 v12, 6, v{vLane}
        v_add_u32 v13, s36, v12
        s_lshl_b32 s36, s{sx}, 9
        s_add_u32 s36, s36, {LSE} - 2048
        v_add_u32 v14, s36, v12
        v_cmp_gt_u32 vcc, 32, v{vLane}
        v_cndmask_b32 v13, v14, v13, vcc
        v_cmp_gt_u32 vcc, 40, v{vLane}
        s_and_saveexec_b64 s[36:37], vcc
        global_load_dword v14, v13, s[{sWS}:{sWS + 1}]
        s_mov_b64 exec, s[36:37]
        L_notouch:
        ''')
    a(f'''
    s_lshl_b32 s36, s{sx}, 15
    s_lshl_b32 s37, s{shi}, 13
    s_add_u32 s36, s36, s37
    s_lshl_b32 s37, s{swave}, 9
    s_add_u32 s36, s36, s37
    s_add_u32 s36, s36, {QP}
    v_lshrrev_b32 v11, 5, v{vLane}
    v_and_b32 v12, 31, v{vLane}
    v_lshlrev_b32 v11, 12, v11
    v_lshl_add_u32 v11, v12, 4, v11
    v_add_u32 v11, s36, v11
    ''')
    L = a.lab('gq')
    for _ in range(opt.get('qpre', 0)): a('s_sleep 32')
    a(f'''
    {L}:
    global_load_dwordx4 v[16:19], v11, s[{sWS}:{sWS + 1}] {LD}
    global_load_dwordx4 v[20:23], v11, s[{sWS}:{sWS + 1}] offset:2048 {LD}
    s_waitcnt vmcnt(0)
    ''')
    tagcheck(list(range(16, 24)), L, opt.get('qsleep', 0))
    a.stamp('qgath')
    a(f'v_mov_b32 v{vTag}, s{stag}')
    for e in range(4): a(f'v_add_f32 v{16 + e}, v{16 + e}, v{20 + e}')
    multi(ADD32, range(16, 20), range(20, 24))
    a(f'''
    v_cvt_pk_bf16_f32 v16, v16, v17
    v_cvt_pk_bf16_f32 v17, v18, v19
    s_mul_i32 s36, s{swave}, 272
    s_add_u32 s36, s36, {QL}
    v_lshlrev_b32 v12, 3, v12
    v_add_u32 v12, s36, v12
    ds_write_b64 v12, v[16:17]
    ''')
    wavesync(0)
    vQ = 16
    a(f'''
    v_min_u32 v11, 3, v{vCol}
    v_mul_u32_u24 v12, 272, v11
    v_lshl_add_u32 v12, v{vG}, 4, v12
    v_add_u32 v12, {QL}, v12
    ''')
    for t in range(4): a(f'ds_read_b128 v[{vQ + 4 * t}:{vQ + 4 * t + 3}], v12 offset:{64 * t}')
    vKA = 32
    a(f'''
    s_lshl_b32 s36, s{swave}, 14
    v_lshlrev_b32 v13, 8, v{vCol}
    v_add_u32 v13, s36, v13
    ''')
    for t in range(4):
        a(f'''
        v_add_u32 v14, {4 * t}, v{vG}
        v_xor_b32 v14, v14, v{vCol}
        v_lshl_add_u32 v{vKA + t}, v14, 4, v13
        ''')
    wait_progress(3)
    a.stamp('Kland')
    vKo, vS = 96, 40
    for tile in range(4):
        for t in range(4):
            a(f'ds_read_b128 v[{vKo + 16 * tile + 4 * t}:{vKo + 16 * tile + 4 * t + 3}], v{vKA + t} offset:{4096 * tile}')
    for r in range(16): a(f'v_mov_b32 v{vS + r}, 0')
    a('s_waitcnt lgkmcnt(0)')
    for t in range(4):
        for tile in range(4):
            a(f'v_mfma_f32_16x16x32_bf16 v[{vS + 4 * tile}:{vS + 4 * tile + 3}], v[{vKo + 16 * tile + 4 * t}:{vKo + 16 * tile + 4 * t + 3}], v[{vQ + 4 * t}:{vQ + 4 * t + 3}], v[{vS + 4 * tile}:{vS + 4 * tile + 3}]')
    vM = 56
    a(f'v_max3_f32 v{vM}, v{vS}, v{vS + 1}, v{vS + 2}')
    for r in range(3, 15, 2): a(f'v_max3_f32 v{vM}, v{vM}, v{vS + r}, v{vS + r + 1}')
    a(f'v_max_f32 v{vM}, v{vM}, v{vS + 15}')
    xmax16(vM, 57); xmax32(vM, 57)
    vXA = 58
    a(f'''
    v_min_u32 v11, 3, v{vCol}
    v_lshlrev_b32 v{vXA}, 4, v11
    v_add_u32 v{vXA}, {XCH}, v{vXA}
    s_lshl_b32 s36, s{swave}, 2
    v_add_u32 v59, s36, v{vXA}
    v_cmp_gt_u32 vcc, 4, v{vLane}
    s_and_saveexec_b64 s[36:37], vcc
    ds_write_b32 v59, v{vM}
    s_mov_b64 exec, s[36:37]
    ''')
    wavesync(1)
    a(f'''
    ds_read_b128 v[60:63], v{vXA}
    s_waitcnt lgkmcnt(0)
    v_max3_f32 v{vM}, v60, v61, v62
    v_max_f32 v{vM}, v{vM}, v63
    ''')
    for r in range(16): a(f'v_sub_f32 v{vS + r}, v{vS + r}, v{vM}')
    for r in range(16): a(f'v_exp_f32 v{vS + r}, v{vS + r}')
    vL = 57
    a(f'v_add_f32 v{vL}, v{vS}, v{vS + 1}')
    for r in range(2, 16): a(f'v_add_f32 v{vL}, v{vL}, v{vS + r}')
    for r in range(8): a(f'v_cvt_pk_bf16_f32 v{64 + r}, v{vS + 2 * r}, v{vS + 2 * r + 1}')
    xsum16(vL, 60); xsum32(vL, 60)
    a(f'''
    v_mul_u32_u24 v61, 528, v11
    v_lshl_add_u32 v61, v{vG}, 3, v61
    s_lshl_b32 s36, s{swave}, 7
    s_add_u32 s36, s36, {PL}
    v_add_u32 v61, s36, v61
    v_cmp_gt_u32 vcc, 4, v{vCol}
    s_and_saveexec_b64 s[36:37], vcc
    ''')
    for tile in range(4): a(f'ds_write_b64 v61, v[{64 + 2 * tile}:{65 + 2 * tile}] offset:{32 * tile}')
    a(f'''
    s_mov_b64 exec, s[36:37]
    v_cmp_gt_u32 vcc, 4, v{vLane}
    s_and_saveexec_b64 s[36:37], vcc
    ds_write_b32 v59, v{vL} offset:64
    s_mov_b64 exec, s[36:37]
    ''')
    wavesync(2)
    a(f'''
    ds_read_b128 v[60:63], v{vXA} offset:64
    v_mul_u32_u24 v64, 528, v11
    v_lshl_add_u32 v64, v{vG}, 4, v64
    v_add_u32 v64, {PL}, v64
    ''')
    vP = 96
    for tau in range(8):
        a(f'''
        s_add_u32 s36, s{slo}, {tau}
        s_and_b32 s36, s36, 7
        s_lshl_b32 s36, s36, 6
        v_add_u32 v65, s36, v64
        ds_read_b128 v[{vP + 4 * tau}:{vP + 4 * tau + 3}], v65
        ''')
    vRL = 56
    a(f'''
    s_waitcnt lgkmcnt(0)
    v_add_f32 v60, v60, v61
    v_add_f32 v62, v62, v63
    v_add_f32 v60, v60, v62
    v_log_f32 v61, v60
    v_rcp_f32 v57, v60
    v_add_f32 v61, v61, v{vM}
    ''')
    vRL = 57
    a(f'''
    s_cmp_eq_u32 s{swave}, 0
    s_cbranch_scc0 L_nolse
    v_mov_b32_dpp v68, v61 quad_perm:[0,0,0,0] row_mask:0xf bank_mask:0xf
    v_mov_b32_dpp v69, v61 quad_perm:[1,1,1,1] row_mask:0xf bank_mask:0xf
    v_mov_b32_dpp v70, v61 quad_perm:[2,2,2,2] row_mask:0xf bank_mask:0xf
    v_mov_b32_dpp v71, v61 quad_perm:[3,3,3,3] row_mask:0xf bank_mask:0xf
    s_lshl_b32 s36, s{sx}, 9
    s_lshl_b32 s37, s{sy}, 4
    s_add_u32 s36, s36, s37
    s_add_u32 s36, s36, {LSE}
    v_mov_b32 v62, s36
    ''')
    tagput(range(68, 72))
    a(f'''
    s_mov_b64 exec, 1
    global_store_dwordx4 v62, v[68:71], s[{sWS}:{sWS + 1}] {ST_A}
    s_mov_b64 exec, -1
    L_nolse:
    ''')
    a.stamp('smax')
    vVA = 72
    a(f'''
    v_bfe_u32 v11, v{vLane}, 2, 2
    v_and_b32 v12, 3, v{vLane}
    v_lshl_add_u32 v13, v{vG}, 3, v11
    v_lshlrev_b32 v13, 8, v13
    v_and_b32 v14, 1, v{vG}
    v_lshl_add_u32 v14, v14, 2, v11
    v_lshlrev_b32 v14, 1, v14
    v_lshrrev_b32 v15, 1, v12
    s_lshl_b32 s36, s{swave}, 2
    v_add_u32 v15, s36, v15
    v_and_b32 v12, 1, v12
    v_lshl_add_u32 v13, v12, 3, v13
    v_add_u32 v13, {V_OFF}, v13
    v_xor_b32 v12, v15, v14
    v_lshl_add_u32 v{vVA}, v12, 4, v13
    v_add_u32 v15, 2, v15
    v_xor_b32 v12, v15, v14
    v_lshl_add_u32 v{vVA + 1}, v12, 4, v13
    ''')
    vO = 76
    for r in range(8): a(f'v_mov_b32 v{vO + r}, 0')
    a(f'''
    s_lshl_b32 s36, s{sx}, 16
    s_lshl_b32 s37, s{sy}, 9
    s_add_u32 s36, s36, s37
    s_lshl_b32 s37, s{swave}, 7
    s_add_u32 s36, s36, s37
    s_add_u32 s36, s36, {OP}
    v_lshlrev_b32 v74, 14, v{vCol}
    v_lshl_add_u32 v74, v{vG}, 4, v74
    v_add_u32 v74, s36, v74
    ''')
    vVo = 128
    def pv(taus):
        for tau in taus:
            k = tau % 2
            base = vVo + 8 * (tau - taus[0])
            a(f'''
            s_add_u32 s36, s{slo}, {tau}
            s_and_b32 s36, s36, 7
            s_lshl_b32 s36, s36, 13
            v_add_u32 v14, s36, v{vVA}
            v_add_u32 v15, s36, v{vVA + 1}
            ds_read_b64_tr_b16 v[{base}:{base + 1}], v14
            ds_read_b64_tr_b16 v[{base + 2}:{base + 3}], v14 offset:1024
            ds_read_b64_tr_b16 v[{base + 4}:{base + 5}], v15
            ds_read_b64_tr_b16 v[{base + 6}:{base + 7}], v15 offset:1024
            ''')
        a('s_waitcnt lgkmcnt(0)')
        for tau in taus:
            base = vVo + 8 * (tau - taus[0])
            for dt in range(2):
                a(f'v_mfma_f32_16x16x32_bf16 v[{vO + 4 * dt}:{vO + 4 * dt + 3}], v[{base + 4 * dt}:{base + 4 * dt + 3}], v[{vP + 4 * tau}:{vP + 4 * tau + 3}], v[{vO + 4 * dt}:{vO + 4 * dt + 3}]')
    wait_progress(4); pv([0, 1, 2, 3])
    wait_progress(5); pv([4, 5])
    wait_progress(6); pv([6])
    wait_progress(7); a.stamp('Vland'); pv([7])
    for r in range(8): a(f'v_mul_f32 v{vO + r}, v{vRL}, v{vO + r}')
    tagput(range(vO, vO + 8))
    a(f'''
    v_cmp_gt_u32 vcc, 4, v{vCol}
    s_and_saveexec_b64 s[36:37], vcc
    global_store_dwordx4 v74, v[{vO}:{vO + 3}], s[{sWS}:{sWS + 1}] {ST_A}
    global_store_dwordx4 v74, v[{vO + 4}:{vO + 7}], s[{sWS}:{sWS + 1}] offset:64 {ST_A}
    s_mov_b64 exec, s[36:37]
    ''')
    a.stamp('opub')
    a(f'''
    s_lshl_b32 s40, s{sx}, 2
    s_add_u32 s40, s40, s{shi}
    s_lshl_b32 s41, s40, 17
    s_lshl_b32 s42, s{slo}, 7
    s_add_u32 s41, s41, s42
    ''')
    srd(44, sWO_, 41, total=4 << 20)
    a(f'''
    v_lshrrev_b32 v11, 3, v{vLane}
    v_and_b32 v12, 7, v{vLane}
    v_bfe_u32 v13, v{vLane}, 4, 1
    v_lshlrev_b32 v13, 1, v13
    v_xor_b32 v12, v12, v13
    v_lshlrev_b32 v11, 10, v11
    v_lshl_add_u32 v14, v12, 4, v11
    v_xor_b32 v12, 4, v12
    v_lshl_add_u32 v15, v12, 4, v11
    s_lshl_b32 s42, s{swave}, 15
    s_lshl_b32 s43, s{swave}, 12
    s_add_u32 s43, s43, {W_OFF}
    ''')
    for n in range(4):
        a(f'''
        s_add_u32 s48, s42, {8192 * n}
        s_add_u32 m0, s43, {1024 * n}
        buffer_load_dwordx4 v{14 + (n & 1)}, s[44:47], s48 offen {NT} lds
        ''')
    a(f'''
    s_lshl_b32 s41, s40, 14
    s_lshl_b32 s42, s{swave}, 7
    s_add_u32 s41, s41, s42
    s_add_u32 s41, s41, {OP}
    v_and_b32 v11, 7, v{vLane}
    v_bfe_u32 v12, v{vLane}, 3, 2
    v_lshrrev_b32 v13, 5, v{vLane}
    v_lshlrev_b32 v14, 12, v12
    v_lshl_add_u32 v14, v13, 11, v14
    v_lshl_add_u32 v14, v11, 4, v14
    v_add_u32 v14, s41, v14
    s_lshl_b32 s41, s{sx}, 9
    s_lshl_b32 s42, s{shi}, 2
    s_add_u32 s41, s41, s42
    s_add_u32 s41, s41, {LSE}
    v_lshlrev_b32 v15, 7, v12
    v_lshl_add_u32 v15, v13, 6, v15
    v_add_u32 v15, s41, v15
    ''')
    L = a.lab('ga')
    if opt.get('apre', 0): a(f"s_sleep {opt['apre']}")
    def a_loads():
        for i in range(4): a(f'global_load_dword v{32 + i}, v15, s[{sWS}:{sWS + 1}] offset:{16 * i} {LD}')
        for i in range(4): a(f'global_load_dwordx4 v[{16 + 4 * i}:{19 + 4 * i}], v14, s[{sWS}:{sWS + 1}] offset:{512 * i} {LD}')
    if opt.get('early_gu', 0):
        a_loads()
        a(f'''
        s_cmp_ge_u32 s{sy}, 28
        s_cbranch_scc1 L_nogu
        ''')
        gu_dma(36)
        a(f'''
        s_waitcnt vmcnt(6)
        s_branch {L}_chk
        L_nogu:
        s_waitcnt vmcnt(0)
        s_branch {L}_chk
        ''')
    a(f'{L}:')
    a_loads()
    a('s_waitcnt vmcnt(0)')
    a(f'{L}_chk:')
    tagcheck(list(range(16, 36)), L, opt.get('asleep', 0))
    a.stamp('gA')
    a(f'''
    v_max3_f32 v36, v32, v33, v34
    v_max_f32 v36, v36, v35
    ''')
    xmax32(36, 37)
    for i in range(4): a(f'v_sub_f32 v{32 + i}, v{32 + i}, v36')
    for i in range(4): a(f'v_exp_f32 v{32 + i}, v{32 + i}')
    a('v_add_f32 v36, v32, v33\nv_add_f32 v37, v34, v35\nv_add_f32 v36, v36, v37')
    xsum32(36, 37)
    a('v_rcp_f32 v36, v36')
    for e in range(4): a(f'v_mul_f32 v{40 + e}, v32, v{16 + e}')
    for i in range(1, 4):
        for e in range(4): a(f'v_fmac_f32 v{40 + e}, v{32 + i}, v{16 + 4 * i + e}')
    multi(ADD32, range(40, 44), range(44, 48))
    for e in range(4): a(f'v_mul_f32 v{40 + e}, v36, v{40 + e}')
    a(f'''
    v_cvt_pk_bf16_f32 v40, v40, v41
    v_cvt_pk_bf16_f32 v41, v42, v43
    v_mul_u32_u24 v12, 272, v12
    v_lshl_add_u32 v12, v11, 3, v12
    s_lshl_b32 s41, s{swave}, 6
    s_add_u32 s41, s41, {OL}
    v_add_u32 v12, s41, v12
    ds_write_b64 v12, v[40:41]
    s_waitcnt lgkmcnt(0)
    ''')
    a('L_tail_entry:')
    a.stamp('preB1')
    a('s_barrier')
    a.stamp('B1')
    a(f'''
    s_cmp_ge_u32 s{swave}, 4
    s_cbranch_scc1 L_s2_done
    ''')
    a(f'''
    v_min_u32 v11, 3, v{vCol}
    v_mul_u32_u24 v12, 272, v11
    v_lshl_add_u32 v12, v{vG}, 4, v12
    v_add_u32 v12, {OL}, v12
    ''')
    for t in range(4):
        a(f'ds_read_b64_tr_b16 v[{32 + 4 * t}:{33 + 4 * t}], v{vWT} offset:{4096 * t}')
        a(f'ds_read_b64_tr_b16 v[{34 + 4 * t}:{35 + 4 * t}], v{vWT} offset:{4096 * t + 512}')
        a(f'ds_read_b128 v[{16 + 4 * t}:{19 + 4 * t}], v12 offset:{64 * t}')
    a(f'''
    v_mov_b32 v64, 0
    v_mov_b32 v65, 0
    v_mov_b32 v66, 0
    v_mov_b32 v67, 0
    s_lshl_b32 s41, s{slo}, 10
    s_lshl_b32 s42, s40, 13
    s_add_u32 s41, s41, s42
    s_lshl_b32 s42, s{swave}, 8
    s_add_u32 s41, s41, s42
    s_add_u32 s41, s41, {QP}
    v_lshlrev_b32 v13, 4, v{vCol}
    v_lshl_add_u32 v13, v{vG}, 6, v13
    v_add_u32 v13, s41, v13
    s_waitcnt lgkmcnt(0)
    ''')
    for t in range(4):
        a(f'v_mfma_f32_16x16x32_bf16 v[64:67], v[{32 + 4 * t}:{35 + 4 * t}], v[{16 + 4 * t}:{19 + 4 * t}], v[64:67]')
    tagput(range(64, 68))
    a(f'''
    v_cmp_gt_u32 vcc, 4, v{vCol}
    s_and_saveexec_b64 s[36:37], vcc
    global_store_dwordx4 v13, v[64:67], s[{sWS}:{sWS + 1}] {ST_B}
    s_mov_b64 exec, s[36:37]
    ''')
    a.stamp('hpub')
    a('L_s2_done:')
    a(f"""
    s_cmp_lt_u32 s{swave}, 4
    s_cbranch_scc1 L_have_tag
    s_waitcnt lgkmcnt(0)
    s_add_u32 s{sep}, s{sep}, 1
    s_and_b32 s{stag}, s{sep}, 0xff
    v_mov_b32 v{vTag}, s{stag}
    v_and_b32 v{vCol}, 15, v{vLane}
    v_lshrrev_b32 v{vG}, 4, v{vLane}
    L_have_tag:
    s_cmp_ge_u32 s{sy}, 28
    s_cbranch_scc1 L_final
    ; S3b role: f = 7x + (y>>2), m = y&3
    s_mul_i32 s43, s{sx}, 7
    s_lshr_b32 s42, s{sy}, 2
    s_add_u32 s43, s43, s42
    s_and_b32 s40, s{sy}, 3
    """)
    if not opt.get('early_gu', 0):
        a(f"""
        s_cmp_ge_u32 s{swave}, 4
        s_cbranch_scc1 L_nodma
        """)
        gu_dma(11)
    a('L_nodma:')
    a(f"""
    s_lshl_b32 s41, s{sx}, 10
    s_lshl_b32 s42, s{swave}, 7
    s_add_u32 s41, s41, s42
    s_add_u32 s41, s41, {QP}
    v_lshrrev_b32 v11, 3, v{vLane}
    v_and_b32 v12, 7, v{vLane}
    v_lshlrev_b32 v11, 13, v11
    v_lshl_add_u32 v11, v12, 4, v11
    v_add_u32 v40, s41, v11
    v_add_u32 v41, 0x10000, v40
    v_add_u32 v42, 0x20000, v40
    v_add_u32 v43, 0x30000, v40
    v_and_b32 v13, 3, v{vLane}
    v_bfe_u32 v14, v{vLane}, 2, 1
    v_lshlrev_b32 v15, 10, v13
    v_lshl_add_u32 v15, v14, 3, v15
    s_lshl_b32 s41, s{sx}, 7
    s_lshl_b32 s42, s{swave}, 4
    s_add_u32 s41, s41, s42
    s_add_u32 s41, s41, {XL}
    v_add_u32 v15, s41, v15
    ds_read_b64 v[44:45], v15
    v_mul_u32_u24 v11, 144, v13
    v_lshl_add_u32 v11, v14, 3, v11
    s_add_u32 s42, s42, {HL}
    v_add_u32 v11, s42, v11
    """)
    a(f"""
    v_bfe_u32 v20, v{vLane}, 2, 2
    v_and_b32 v21, 3, v{vLane}
    v_lshl_add_u32 v46, v{vG}, 3, v20
    v_lshlrev_b32 v46, 7, v46
    v_lshrrev_b32 v23, 1, v20
    v_and_b32 v24, 1, v{vG}
    v_lshl_add_u32 v23, v24, 1, v23
    v_lshlrev_b32 v23, 1, v23
    v_lshrrev_b32 v24, 1, v21
    s_and_b32 s41, s{swave}, 3
    s_lshl_b32 s42, s41, 1
    v_add_u32 v24, s42, v24
    v_xor_b32 v24, v24, v23
    v_lshl_add_u32 v46, v24, 4, v46
    v_and_b32 v21, 1, v21
    v_lshl_add_u32 v46, v21, 3, v46
    v_mov_b32 v20, {ZL}
    v_mov_b32 v21, {XL + 4096}
    v_mul_u32_u24 v22, 144, v{vCol}
    v_add_u32 v22, {HL}, v22
    v_cmp_eq_u32 vcc, 8, v{vCol}
    v_cndmask_b32 v47, v20, v21, vcc
    v_cmp_gt_u32 vcc, 4, v{vCol}
    v_cndmask_b32 v47, v47, v22, vcc
    v_lshl_add_u32 v47, v{vG}, 4, v47
    v_cmp_eq_u32 vcc, 9, v{vCol}
    v_cndmask_b32 v48, v20, v21, vcc
    v_subrev_u32 v22, {4 * 144}, v22
    v_lshrrev_b32 v23, 2, v{vCol}
    v_cmp_eq_u32 vcc, 1, v23
    v_cndmask_b32 v48, v48, v22, vcc
    v_lshl_add_u32 v48, v{vG}, 4, v48
    s_lshl_b32 s52, s{sy}, 2
    s_add_u32 s52, s52, s41
    s_mul_i32 s52, s52, 5120
    s_mul_i32 s53, s{sx}, 640
    s_add_u32 s52, s52, s53
    s_add_u32 s52, s52, {GP}
    v_lshlrev_b32 v22, 4, v{vCol}
    v_lshl_add_u32 v23, v{vG}, 7, v22
    v_lshl_add_u32 v24, v{vG}, 5, v22
    v_add_u32 v24, {512 - 128}, v24
    v_cmp_gt_u32 vcc, 8, v{vCol}
    v_cndmask_b32 v49, v24, v23, vcc
    v_add_u32 v49, s52, v49
    """)
    L = a.lab('gb')
    if opt.get('bpre', 0): a(f"s_sleep {opt['bpre']}")
    a(f'{L}:')
    for i in range(4): a(f'global_load_dwordx4 v[{16 + 4 * i}:{19 + 4 * i}], v{40 + i}, s[{sWS}:{sWS + 1}] {LD}')
    a('s_waitcnt vmcnt(0)')
    tagcheck(list(range(16, 32)), L, opt.get('bsleep', 0))
    a.stamp('gB')
    for e in range(4): a(f'v_add_f32 v{16 + e}, v{16 + e}, v{20 + e}')
    for e in range(4): a(f'v_add_f32 v{24 + e}, v{24 + e}, v{28 + e}')
    for e in range(4): a(f'v_add_f32 v{16 + e}, v{16 + e}, v{24 + e}')
    ror_add(range(16, 20), 8)
    multi(ADD16, range(16, 20), range(20, 24))
    multi(ADD32, range(16, 20), range(20, 24))
    a(f"""
    s_waitcnt lgkmcnt(0)
    v_lshlrev_b32 v20, 16, v44
    v_and_b32 v21, 0xffff0000, v44
    v_lshlrev_b32 v22, 16, v45
    v_and_b32 v23, 0xffff0000, v45
    """)
    for e in range(4): a(f'v_add_f32 v{16 + e}, v{16 + e}, v{20 + e}')
    a(f"""
    v_cvt_pk_bf16_f32 v16, v16, v17
    v_cvt_pk_bf16_f32 v17, v18, v19
    s_mov_b64 exec, 0xff
    ds_write_b64 v11, v[16:17]
    s_mov_b64 exec, -1
    s_waitcnt lgkmcnt(0)
    """)
    a.stamp('preB2')
    a('s_barrier')
    a.stamp('B2')
    a(f"""
    s_cmp_ge_u32 s{swave}, 4
    s_cbranch_scc1 L_s3a_done
    """)
    for t in range(2):
        a(f'ds_read_b128 v[{16 + 4 * t}:{19 + 4 * t}], v47 offset:{64 * t}')
        a(f'ds_read_b128 v[{24 + 4 * t}:{27 + 4 * t}], v48 offset:{64 * t}')
        for mat, off in enumerate((GATE_OFF, UP_OFF)):
            a(f'ds_read_b64_tr_b16 v[{32 + 8 * mat + 4 * t}:{33 + 8 * mat + 4 * t}], v46 offset:{off + 4096 * t}')
            a(f'ds_read_b64_tr_b16 v[{34 + 8 * mat + 4 * t}:{35 + 8 * mat + 4 * t}], v46 offset:{off + 4096 * t + 512}')
    a(f"""
    v_mov_b32 v64, 0
    v_mov_b32 v65, 0
    v_mov_b32 v66, 0
    v_mov_b32 v67, 0
    v_mov_b32 v68, 0
    v_mov_b32 v69, 0
    v_mov_b32 v70, 0
    v_mov_b32 v71, 0
    s_lshl_b32 s53, s{sy}, 11
    s_lshl_b32 s54, s{sx}, 7
    s_add_u32 s53, s53, s54
    s_add_u32 s53, s53, {MO}
    v_lshlrev_b32 v50, 4, v{vCol}
    v_lshl_add_u32 v50, v{vG}, 5, v50
    v_add_u32 v50, s53, v50
    s_waitcnt lgkmcnt(0)
    """)
    a.stamp('s3mf')
    for t in range(2):
        a(f'v_mfma_f32_16x16x32_bf16 v[64:67], v[{32 + 4 * t}:{35 + 4 * t}], v[{16 + 4 * t}:{19 + 4 * t}], v[64:67]')
    for t in range(2):
        a(f'v_mfma_f32_16x16x32_bf16 v[64:67], v[{40 + 4 * t}:{43 + 4 * t}], v[{24 + 4 * t}:{27 + 4 * t}], v[64:67]')
    for t in range(2):
        a(f'v_mfma_f32_16x16x32_bf16 v[68:71], v[{16 + 4 * t}:{19 + 4 * t}], v[{16 + 4 * t}:{19 + 4 * t}], v[68:71]')
    tagput(range(64, 68))
    a(f"""
    v_cmp_gt_u32 vcc, 10, v{vCol}
    s_and_saveexec_b64 s[36:37], vcc
    global_store_dwordx4 v49, v[64:67], s[{sWS}:{sWS + 1}] {ST_G}
    s_mov_b64 exec, s[36:37]
    s_cmp_eq_u32 s{swave}, 0
    s_cbranch_scc0 L_nomom
    """)
    tagput(range(68, 72))
    a(f"""
    v_and_b32 v51, 0x1c, v{vLane}
    v_cmp_eq_u32 vcc, 0, v51
    s_and_saveexec_b64 s[36:37], vcc
    global_store_dwordx4 v50, v[68:71], s[{sWS}:{sWS + 1}] {ST_G}
    global_store_dwordx4 v50, v[68:71], s[{sWS}:{sWS + 1}] offset:1024 {ST_G}
    s_mov_b64 exec, s[36:37]
    L_nomom:
    """)
    a.stamp('gpub')
    a('L_s3a_done:')
    a(f"""
    ; GQ + ((f>>1)*4 + 2*(f&1) + (w>>2))*5120 + i*640 + (w&3)*128 + (l&7)*16
    s_lshl_b32 s52, s43, 1
    s_lshr_b32 s53, s{swave}, 2
    s_add_u32 s52, s52, s53
    s_mul_i32 s52, s52, 5120
    s_add_u32 s52, s52, {GP}
    s_and_b32 s53, s{swave}, 3
    v_lshrrev_b32 v13, 3, v{vLane}
    v_mul_u32_u24 v12, 640, v13
    v_add_u32 v12, s52, v12
    v_and_b32 v11, 7, v{vLane}
    v_lshl_add_u32 v11, v11, 4, v12
    s_lshl_b32 s54, s53, 7
    v_add_u32 v11, s54, v11
    v_bfe_u32 v14, v{vLane}, 2, 1
    v_lshl_add_u32 v12, v14, 4, v12
    s_lshl_b32 s54, s53, 5
    s_add_u32 s54, s54, 512
    v_add_u32 v12, s54, v12
    s_lshl_b32 s52, s43, 10
    s_add_u32 s52, s52, {MO}
    v_and_b32 v14, 3, v{vLane}
    v_lshlrev_b32 v13, 7, v13
    v_lshl_add_u32 v13, v14, 4, v13
    v_add_u32 v13, s52, v13
    v_lshl_add_u32 v15, v14, 2, v13
    """)
    a(f"""
    v_bfe_u32 v40, v{vLane}, 2, 2
    v_and_b32 v41, 3, v{vLane}
    v_lshl_add_u32 v42, v{vG}, 3, v40
    v_lshlrev_b32 v42, 8, v42
    v_and_b32 v43, 1, v{vG}
    v_lshl_add_u32 v43, v43, 2, v40
    v_lshlrev_b32 v43, 1, v43
    v_lshrrev_b32 v44, 1, v41
    s_lshl_b32 s52, s{swave}, 1
    v_add_u32 v44, s52, v44
    v_xor_b32 v44, v44, v43
    v_lshl_add_u32 v42, v44, 4, v42
    v_and_b32 v41, 1, v41
    v_lshl_add_u32 v42, v41, 3, v42
    ds_read_b64_tr_b16 v[52:53], v42 offset:{DOWN_OFF}
    ds_read_b64_tr_b16 v[54:55], v42 offset:{DOWN_OFF + 1024}
    v_bfe_u32 v56, v{vLane}, 3, 2
    v_cmp_eq_u32 s[60:61], 1, v56
    v_cmp_eq_u32 s[62:63], 2, v56
    v_cmp_eq_u32 s[64:65], 3, v56
    v_and_b32 v57, 3, v{vLane}
    v_mul_u32_u24 v57, 80, v57
    v_lshl_add_u32 v57, v56, 1, v57
    s_lshl_b32 s52, s{swave}, 3
    s_add_u32 s52, s52, {GL}
    v_add_u32 v57, s52, v57
    v_min_u32 v58, 3, v{vCol}
    v_mul_u32_u24 v58, 80, v58
    v_lshl_add_u32 v58, v{vG}, 4, v58
    v_add_u32 v58, {GL}, v58
    ; DP + (m*56 + f)*2048 + (4w+g)*64 + b*16
    s_mul_i32 s52, s40, 56
    s_add_u32 s52, s52, s43
    s_lshl_b32 s52, s52, 11
    s_lshl_b32 s53, s{swave}, 8
    s_add_u32 s52, s52, s53
    s_add_u32 s52, s52, {DP}
    v_lshlrev_b32 v59, 4, v{vCol}
    v_lshl_add_u32 v59, v{vG}, 6, v59
    v_add_u32 v59, s52, v59
    v_mov_b32 v64, 0
    v_mov_b32 v65, 0
    v_mov_b32 v66, 0
    v_mov_b32 v67, 0
    """)
    L = a.lab('gg')
    if opt.get('gpre', 0): a(f"s_sleep {opt['gpre']}")
    a(f"""
    {L}:
    global_load_dwordx4 v[16:19], v11, s[{sWS}:{sWS + 1}] {LD}
    global_load_dwordx4 v[20:23], v12, s[{sWS}:{sWS + 1}] {LD}
    global_load_dword v24, v13, s[{sWS}:{sWS + 1}] offset:64 {LD}
    global_load_dword v25, v15, s[{sWS}:{sWS + 1}] {LD}
    s_waitcnt vmcnt(0)
    """)
    tagcheck(list(range(16, 26)), L, opt.get('gsleep', 0))
    a.stamp('gB3')
    rs = list(range(16, 26))
    ror_add(rs, 8)
    multi(ADD16, rs, range(26, 36))
    multi(ADD32, rs, range(26, 36))
    a(f"""
    v_mul_f32 v24, {1.0 / 512}, v24
    v_mul_f32 v25, {1.0 / 512}, v25
    v_fma_f32 v25, -v24, v24, v25
    v_add_f32 v25, 0x{f2u(1e-5):08x}, v25
    v_rsq_f32 v25, v25
    """)
    for e in range(4): a(f'v_fma_f32 v{16 + e}, -v24, v{20 + e}, v{16 + e}')
    a(f"""
    v_cndmask_b32 v16, v16, v17, s[60:61]
    v_cndmask_b32 v16, v16, v18, s[62:63]
    v_cndmask_b32 v16, v16, v19, s[64:65]
    v_mul_f32 v16, v16, v25
    v_mov_b32_dpp v17, v16 row_half_mirror row_mask:0xf bank_mask:0xf
    v_mov_b32_dpp v17, v17 quad_perm:[3,2,1,0] row_mask:0xf bank_mask:0xf
    v_mul_f32 v18, v16, v16
    v_mov_b32 v19, 0x{f2u(GA):08x}
    v_fmac_f32 v19, 0x{f2u(GB):08x}, v18
    v_mul_f32 v19, v19, v16
    v_exp_f32 v19, v19
    v_add_f32 v19, 1.0, v19
    v_rcp_f32 v19, v19
    v_mul_f32 v19, v19, v16
    v_mul_f32 v19, v19, v17
    v_cvt_pk_bf16_f32 v19, v19, v19
    v_and_b32 v21, 0x24, v{vLane}
    v_cmp_eq_u32 vcc, 0, v21
    s_and_saveexec_b64 s[36:37], vcc
    ds_write_b16 v57, v19
    s_mov_b64 exec, s[36:37]
    s_waitcnt lgkmcnt(0)
    """)
    a.stamp('preB3')
    a('s_barrier')
    a.stamp('B3')
    a(f"""
    ds_read_b128 v[32:35], v58
    s_waitcnt lgkmcnt(0)
    v_mfma_f32_16x16x32_bf16 v[64:67], v[52:55], v[32:35], v[64:67]
    """)
    tagput(range(64, 68))
    a(f"""
    v_cmp_gt_u32 vcc, 4, v{vCol}
    s_and_saveexec_b64 s[36:37], vcc
    global_store_dwordx4 v59, v[64:67], s[{sWS}:{sWS + 1}] {ST_D}
    s_mov_b64 exec, s[36:37]
    """)
    a.stamp('dpub')
    a('s_branch L_fin')
    a(f"""
    L_final:
    s_cmp_ge_u32 s{swave}, 4
    s_cbranch_scc1 L_fin
    s_sub_u32 s41, s{sy}, 28
    s_lshl_b32 s41, s41, 2
    s_add_u32 s41, s41, s{swave}
    s_lshl_b32 s42, s{sx}, 10
    s_lshl_b32 s43, s41, 6
    s_add_u32 s42, s42, s43
    s_add_u32 s42, s42, {QP}
    s_lshl_b32 s43, s{sx}, 4
    s_add_u32 s41, s41, s43
    v_lshrrev_b32 v11, 2, v{vLane}
    v_and_b32 v12, 3, v{vLane}
    v_lshlrev_b32 v13, 13, v11
    v_lshl_add_u32 v13, v12, 4, v13
    v_add_u32 v13, s42, v13
    v_add_u32 v14, 0x20000, v13
    s_lshl_b32 s43, s41, 3
    s_add_u32 s43, s43, {XL}
    v_lshlrev_b32 v15, 10, v12
    v_add_u32 v15, s43, v15
    ds_read_b64 v[40:41], v15
    """)
    L = a.lab('gh')
    if opt.get('hpre', 0): a(f"s_sleep {opt['hpre']}")
    a(f"""
    {L}:
    global_load_dwordx4 v[16:19], v13, s[{sWS}:{sWS + 1}] {LD}
    global_load_dwordx4 v[20:23], v14, s[{sWS}:{sWS + 1}] {LD}
    s_waitcnt vmcnt(0)
    """)
    tagcheck(list(range(16, 24)), L, opt.get('hsleep', 0))
    a.stamp('gH')
    for e in range(4): a(f'v_add_f32 v{44 + e}, v{16 + e}, v{20 + e}')
    a(f"""
    s_lshr_b32 s42, s41, 5
    s_mul_i32 s42, s42, {56 * 2048}
    s_and_b32 s43, s41, 31
    s_lshl_b32 s43, s43, 6
    s_add_u32 s42, s42, s43
    s_add_u32 s42, s42, {DP}
    v_lshlrev_b32 v13, 11, v11
    v_lshl_add_u32 v13, v12, 4, v13
    v_add_u32 v13, s42, v13
    v_add_u32 v14, 0x8000, v13
    v_add_u32 v15, 0x10000, v13
    v_add_u32 v32, 0x18000, v13
    v_cmp_gt_u32 s[60:61], 32, v{vLane}
    v_cndmask_b32 v32, v13, v32, s[60:61]
    v_cndmask_b32 v33, 0, 1.0, s[60:61]
    """)
    L = a.lab('gd')
    if opt.get('cpre', 0): a(f"s_sleep {opt['cpre']}")
    a(f"""
    {L}:
    global_load_dwordx4 v[16:19], v13, s[{sWS}:{sWS + 1}] {LD}
    global_load_dwordx4 v[20:23], v14, s[{sWS}:{sWS + 1}] {LD}
    global_load_dwordx4 v[24:27], v15, s[{sWS}:{sWS + 1}] {LD}
    global_load_dwordx4 v[28:31], v32, s[{sWS}:{sWS + 1}] {LD}
    s_waitcnt vmcnt(0)
    """)
    tagcheck(list(range(16, 32)), L, opt.get('csleep', 0))
    a.stamp('gC')
    for e in range(4): a(f'v_add_f32 v{44 + e}, v{44 + e}, v{16 + e}')
    for e in range(4): a(f'v_add_f32 v{20 + e}, v{20 + e}, v{24 + e}')
    for e in range(4): a(f'v_fmac_f32 v{44 + e}, v33, v{28 + e}')
    for e in range(4): a(f'v_add_f32 v{44 + e}, v{44 + e}, v{20 + e}')
    rs = list(range(44, 48))
    ror_add(rs, 4); ror_add(rs, 8)
    multi(ADD16, rs, range(48, 52))
    multi(ADD32, rs, range(48, 52))
    a(f"""
    s_waitcnt lgkmcnt(0)
    v_lshlrev_b32 v48, 16, v40
    v_and_b32 v49, 0xffff0000, v40
    v_lshlrev_b32 v50, 16, v41
    v_and_b32 v51, 0xffff0000, v41
    """)
    for e in range(4): a(f'v_add_f32 v{44 + e}, v{44 + e}, v{48 + e}')
    a(f"""
    v_cvt_pk_bf16_f32 v44, v44, v45
    v_cvt_pk_bf16_f32 v45, v46, v47
    s_lshl_b32 s42, s41, 3
    v_lshlrev_b32 v15, 10, v12
    v_add_u32 v15, s42, v15
    v_cmp_gt_u32 vcc, 4, v{vLane}
    s_and_saveexec_b64 s[36:37], vcc
    global_store_dwordx2 v15, v[44:45], s[{sOUT}:{sOUT + 1}]
    s_mov_b64 exec, s[36:37]
    s_cmp_eq_u32 s41, 0
    s_cbranch_scc0 L_fin
    v_mov_b32 v16, 0
    v_mov_b32 v17, s{sep}
    s_mov_b64 exec, 1
    global_store_dword v16, v17, s[{sWS}:{sWS + 1}] sc1
    s_mov_b64 exec, -1
    L_fin:
    """)
    if opt.get('stamps'):
        a(f'''
        s_memrealtime s[100:101]
        s_waitcnt lgkmcnt(0)
        s_lshl_b32 s36, s2, 3
        s_add_u32 s36, s36, s{swave}
        s_lshl_b32 s36, s36, 7
        s_add_u32 s36, s36, {STAMP}
        v_mov_b32 v16, s36
        ''')
        for i in range(15):
            a(f'v_mov_b32 v18, s{72 + 2 * i}\nv_mov_b32 v19, s{73 + 2 * i}\nglobal_store_dwordx2 v16, v[18:19], s[{sWS}:{sWS + 1}] offset:{8 * i}\ns_nop 1')
        a(f'v_mov_b32 v18, s66\nv_mov_b32 v19, 0\nglobal_store_dwordx2 v16, v[18:19], s[{sWS}:{sWS + 1}] offset:120')
    a('L_end:\ns_endpgm')

    lines, added = hz.fix(a.l)
    hdr = f'''; @launch grid=(256,1,1) block=(512,1,1) lds=163840
; slots: {','.join(opt.get('slots', [])) if opt.get('stamps') else ''}
.amdgcn_target "amdgcn-amd-amdhsa--gfx950"
.text
.globl {KN}
.p2align 8
.type {KN},@function
{KN}:
'''
    ftr = f'''
.section .rodata,"a"
.p2align 6
.amdhsa_kernel {KN}
  .amdhsa_next_free_vgpr 160
  .amdhsa_next_free_sgpr 102
  .amdhsa_accum_offset 160
  .amdhsa_group_segment_fixed_size 0
  .amdhsa_kernarg_size 96
  .amdhsa_user_sgpr_count 2
  .amdhsa_user_sgpr_kernarg_segment_ptr 1
  .amdhsa_system_sgpr_workgroup_id_x 1
.end_amdhsa_kernel
'''
    return hdr + '\n'.join(lines) + '\n' + ftr, added

if __name__ == '__main__':
    import argparse
    p = argparse.ArgumentParser()
    p.add_argument('-o', default='k.s'); p.add_argument('--stamps', action='store_true')
    p.add_argument('--opt', action='append', default=[])
    args = p.parse_args()
    opt = {'stamps': args.stamps}
    opt['slots'] = 'wq,ldrEnd,qgath,Kland,smax,Vland,opub,gA,hpub,gB,gpub,gB3,gC'.split(',')
    for o in args.opt:
        k, v = o.split('=', 1)
        try: v = int(v)
        except ValueError: pass
        opt[k] = v.split(',') if k == 'slots' else v
    assert len(opt['slots']) <= 13
    txt, added = build(opt)
    open(args.o, 'w').write(txt)
    print('wrote', args.o, 'lines', txt.count('\n'), 'nops added', added)
```

```python
import sys, math
import hz

NAME = "sequential_preLN__sliding_block_cached__geglu_ffn__decode"
KN = NAME + "_kernel"

K_OFF, V_OFF, W_OFF = 0, 65536, 131072
XL = 147456
QL = XL + 5 * 1024
PL = QL + 4 * 272
OL = PL + 4 * 528
HL = OL + 4 * 272
ZL = HL + 1024
ON32 = ZL
GL = ON32 + 1024
XCH = GL + 320
FLG = XCH + 128
LDS_END = FLG + 64
assert LDS_END <= 163840
GATE_OFF, UP_OFF, DOWN_OFF = 0, 8192, 16384

QP, LSE, OP, HP, GP, CS, MO, DP = 0x10000, 0x52000, 0x80000, 0x100000, 0x140000, 0x1C0000, 0x1E0000, 0x200000
STAMP = 0x8000000

SCALE = 1.4426950408889634 * (128 ** -0.5)
GA = -2.0 * math.sqrt(2.0 / math.pi) * 1.4426950408889634
GB = GA * 0.044715

def f2u(x):
    import struct
    return struct.unpack('<I', struct.pack('<f', x))[0]

class G:
    def __init__(s, opt):
        s.l = []; s.opt = opt; s.uid = 0
    def __call__(s, t):
        for x in t.strip('\n').split('\n'):
            x = x.strip()
            if not x: continue
            s.l.append(x if x.endswith(':') else '    ' + x)
    def lab(s, p):
        s.uid += 1
        return f'L_{p}_{s.uid}'
    def stamp(s, name):
        slots = s.opt.get('slots')
        if s.opt.get('stamps') and name in slots:
            i = slots.index(name) + 1
            s(f's_memrealtime s[{72 + 2 * i}:{73 + 2 * i}]')

def build(opt):
    a = G(opt)
    W = opt.get('window', 8)
    LIMIT = opt.get('limit', 30000)
    ST_Q = opt.get('st_q', 'sc1')
    ST_A = opt.get('st_a', 'sc1')
    ST_B = 'sc1'
    ST_G = 'sc1'
    ST_D = 'sc1'
    LD = 'sc1'
    NT = opt.get('nt', 'nt')

    sX_, sK_, sV_, sWQ_, sWO_, sWG_, sWU_, sWD_, sOUT, sWS = 4, 6, 8, 10, 12, 16, 18, 20, 22, 26
    sx, sy, shi, slo, swave, stag, sep, ssel = 28, 29, 30, 31, 32, 33, 34, 35
    vTid, vLane, vTag, vAcc = 0, 1, 2, 3

    def wait_progress(val, vt=4, vaddr=5):
        L = a.lab('wp')
        a(f'''
        {L}:
        ds_read_b128 v[88:91], v{vaddr}
        s_waitcnt lgkmcnt(0)
        v_min3_u32 v88, v88, v89, v90
        v_min_u32 v88, v88, v91
        v_readfirstlane_b32 s67, v88
        s_cmp_ge_u32 s67, {val}
        s_cbranch_scc0 {L}
        ''')

    def wavesync(k, vt=4, vaddr=5, vone=6):
        L = a.lab('ws')
        a(f'''
        s_waitcnt lgkmcnt(0)
        s_mov_b64 exec, 1
        ds_add_u32 v{vaddr}, v{vone} offset:{16 + 4 * k}
        s_mov_b64 exec, -1
        {L}:
        ds_read_b32 v{vt}, v{vaddr} offset:{16 + 4 * k}
        s_waitcnt lgkmcnt(0)
        v_readfirstlane_b32 s67, v{vt}
        s_cmp_ge_u32 s67, 4
        s_cbranch_scc0 {L}
        ''')

    def tagcheck(rs, L, sleep=0):
        ok = L + '_ok'
        a(f'v_xor_b32 v{vAcc}, v{rs[0]}, v{vTag}')
        for r in rs[1:]:
            a(f'v_bitop3_b32 v{vAcc}, v{vAcc}, v{r}, v{vTag} bitop3:0xF6')
        a(f'''
        v_and_b32 v{vAcc}, 0xff, v{vAcc}
        v_cmp_ne_u32 vcc, 0, v{vAcc}
        s_cbranch_vccz {ok}
        {('s_sleep ' + str(sleep)) if sleep else ''}
        s_add_u32 s66, s66, 1
        s_cmp_lt_u32 s66, {LIMIT}
        s_cbranch_scc1 {L}
        {ok}:
        ''')

    def tagput(rs):
        for r in rs:
            a(f'v_perm_b32 v{r}, v{r}, v{vTag}, s{ssel}')

    def xsum32(r, t):
        a(f'v_mov_b32 v{t}, v{r}\nv_permlane32_swap_b32 v{r}, v{t}\nv_add_f32 v{r}, v{r}, v{t}')
    def xsum16(r, t):
        a(f'v_mov_b32 v{t}, v{r}\nv_permlane16_swap_b32 v{r}, v{t}\nv_add_f32 v{r}, v{r}, v{t}')
    def xmax32(r, t):
        a(f'v_mov_b32 v{t}, v{r}\nv_permlane32_swap_b32 v{r}, v{t}\nv_max_f32 v{r}, v{r}, v{t}')
    def xmax16(r, t):
        a(f'v_mov_b32 v{t}, v{r}\nv_permlane16_swap_b32 v{r}, v{t}\nv_max_f32 v{r}, v{r}, v{t}')
    def multi(fn, rs, ts):
        op, perm = fn
        for r, t in zip(rs, ts): a(f'v_mov_b32 v{t}, v{r}')
        for r, t in zip(rs, ts): a(f'{perm} v{r}, v{t}')
        for r, t in zip(rs, ts): a(f'{op} v{r}, v{r}, v{t}')
    ADD32 = ('v_add_f32', 'v_permlane32_swap_b32'); ADD16 = ('v_add_f32', 'v_permlane16_swap_b32')
    def ror_add(rs, n):
        for r in rs: a(f'v_add_f32_dpp v{r}, v{r}, v{r} row_ror:{n} row_mask:0xf bank_mask:0xf')

    def srd(d, ptr, off_sgpr, size=None, total=None):
        if off_sgpr is None:
            a(f's_mov_b32 s{d}, s{ptr}\ns_mov_b32 s{d + 1}, s{ptr + 1}')
        else:
            a(f's_add_u32 s{d}, s{ptr}, s{off_sgpr}\ns_addc_u32 s{d + 1}, s{ptr + 1}, 0')
        if size is not None: a(f's_mov_b32 s{d + 2}, {size}')
        else: a(f's_sub_u32 s{d + 2}, {total}, s{off_sgpr}')
        a(f's_mov_b32 s{d + 3}, 0x20000')

    def gu_dma(vb):
        v0, v1, v2, v3, v4 = vb, vb + 1, vb + 2, vb + 3, vb + 4
        a(f"""
        s_mul_i32 s41, s{sx}, {64 * 3584}
        s_lshl_b32 s42, s{sy}, 7
        s_add_u32 s41, s41, s42
        """)
        srd(44, sWG_, 41, total=512 * 3584)
        srd(48, sWU_, 41, total=512 * 3584)
        a(f"""
        s_mul_i32 s52, s{sx}, 7
        s_lshr_b32 s53, s{sy}, 2
        s_add_u32 s52, s52, s53
        s_lshl_b32 s52, s52, 15
        s_and_b32 s53, s{sy}, 3
        s_lshl_b32 s53, s53, 8
        s_add_u32 s52, s52, s53
        """)
        srd(56, sWD_, 52, total=1792 * 1024)
        a(f"""
        v_lshrrev_b32 v{v0}, 3, v{vLane}
        v_and_b32 v{v1}, 7, v{vLane}
        v_bfe_u32 v{v2}, v{vLane}, 4, 1
        v_lshlrev_b32 v{v2}, 1, v{v2}
        v_xor_b32 v{v1}, v{v1}, v{v2}
        v_mul_u32_u24 v{v0}, 3584, v{v0}
        v_lshl_add_u32 v{v3}, v{v1}, 4, v{v0}
        v_xor_b32 v{v1}, 4, v{v1}
        v_lshl_add_u32 v{v4}, v{v1}, 4, v{v0}
        s_mul_i32 s52, s{swave}, {16 * 3584}
        s_lshl_b32 s53, s{swave}, 11
        """)
        for mat, (sr, off) in enumerate(((44, GATE_OFF), (48, UP_OFF))):
            for n in range(2):
                a(f"""
                s_add_u32 s54, s52, {8 * 3584 * n}
                s_add_u32 m0, s53, {off + 1024 * n}
                buffer_load_dwordx4 v{v3 + n}, s[{sr}:{sr + 3}], s54 offen {NT} lds
                """)
        a(f"""
        v_lshrrev_b32 v{v0}, 4, v{vLane}
        v_and_b32 v{v1}, 15, v{vLane}
        s_and_b32 s54, s{swave}, 1
        s_lshl_b32 s54, s54, 2
        v_add_u32 v{v2}, s54, v{v0}
        v_lshlrev_b32 v{v2}, 1, v{v2}
        v_xor_b32 v{v1}, v{v1}, v{v2}
        v_lshlrev_b32 v{v0}, 10, v{v0}
        v_lshl_add_u32 v{v3}, v{v1}, 4, v{v0}
        s_lshl_b32 s52, s{swave}, 13
        """)
        for n in range(2):
            a(f"""
            s_add_u32 s54, s52, {4096 * n}
            s_add_u32 m0, s53, {DOWN_OFF + 1024 * n}
            buffer_load_dwordx4 v{v3}, s[56:59], s54 offen {NT} lds
            """)

    a(f'''
    s_cmp_ge_u32 s2, 256
    s_cbranch_scc1 L_end
    s_load_dwordx16 s[4:19], s[0:1], 0
    s_load_dwordx8 s[20:27], s[0:1], 64
    ''')
    if opt.get('stamps'):
        a('s_memrealtime s[72:73]')
        for i in range(1, 14): a(f's_mov_b64 s[{72 + 2 * i}:{73 + 2 * i}], 0')
    a(f'''
    v_and_b32 v{vLane}, 63, v0
    v_lshrrev_b32 v4, 6, v0
    s_and_b32 s{sx}, s2, 7
    v_readfirstlane_b32 s{swave}, v4
    s_lshr_b32 s{sy}, s2, 3
    s_lshr_b32 s{shi}, s{sy}, 3
    s_and_b32 s{slo}, s{sy}, 7
    s_mov_b32 s{ssel}, 0x07060500
    s_mov_b32 s66, 0
    s_waitcnt lgkmcnt(0)
    s_cmp_ge_u32 s{swave}, 4
    s_cbranch_scc1 L_loader
    s_load_dword s{sep}, s[{sWS}:{sWS + 1}], 0
    v_mov_b32 v5, {FLG}
    v_mov_b32 v6, 1
    s_branch L_comp
    ''')
    a('L_loader:')
    a.stamp('ldr0')
    sSX, sSW, sSK, sSV, sj = 36, 40, 44, 48, 57
    a(f's_sub_u32 s{sj}, s{swave}, 4')
    srd(sSX, sX_, None, size=4096)
    a(f'''
    s_lshl_b32 s52, s{shi}, 20
    s_lshl_b32 s53, s{sx}, 10
    s_add_u32 s52, s52, s53
    s_lshl_b32 s53, s{slo}, 7
    s_add_u32 s52, s52, s53
    ''')
    srd(sSW, sWQ_, 52, total=4 << 20)
    a(f'''
    s_lshl_b32 s52, s{shi}, 3
    s_add_u32 s52, s52, s{sx}
    s_lshl_b32 s52, s52, 21
    s_lshl_b32 s53, s{slo}, 16
    s_add_u32 s52, s52, s53
    s_add_u32 s52, s52, {6144 * 256}
    ''')
    srd(sSK, sK_, 52, size=65536)
    srd(sSV, sV_, 52, size=65536)
    vL16, vWQ, vK, vV = 4, 6, 8, 9
    a(f'''
    v_lshlrev_b32 v{vL16}, 4, v{vLane}
    v_lshrrev_b32 v20, 3, v{vLane}
    v_and_b32 v21, 7, v{vLane}
    v_bfe_u32 v22, v{vLane}, 4, 1
    v_lshlrev_b32 v22, 1, v22
    v_lshlrev_b32 v20, 13, v20
    v_xor_b32 v23, v21, v22
    v_lshl_add_u32 v{vWQ}, v23, 4, v20
    v_xor_b32 v23, 4, v23
    v_lshl_add_u32 v{vWQ + 1}, v23, 4, v20
    v_lshrrev_b32 v20, 4, v{vLane}
    v_and_b32 v21, 15, v{vLane}
    v_lshlrev_b32 v22, 8, v20
    s_lshl_b32 s53, s{sj}, 2
    v_add_u32 v23, s53, v20
    v_xor_b32 v23, v21, v23
    v_lshl_add_u32 v{vK}, v23, 4, v22
    s_lshr_b32 s53, s{sj}, 1
    s_lshl_b32 s53, s53, 2
    v_add_u32 v23, s53, v20
    v_lshlrev_b32 v23, 1, v23
    v_xor_b32 v23, v21, v23
    v_lshl_add_u32 v{vV}, v23, 4, v22
    s_lshl_b32 s58, s{sj}, 10
    s_lshl_b32 s59, s{sj}, 2
    s_add_u32 s59, s59, {FLG}
    v_mov_b32 v16, s59
    s_lshl_b32 s54, s{slo}, 1
    ''')
    seq = [('x', 0)] + [('wq', n) for n in range(4)] + [('K', n) for n in range(16)] + [('V', n) for n in range(16)]
    miles = {0: 1, 4: 2, 20: 3, 21 + 7: 4, 21 + 11: 5, 21 + 13: 6, 21 + 15: 7}
    def progress(val):
        a(f'v_mov_b32 v17, {val}\nds_write_b32 v16, v17')
    def lds_init():
        a(f'''
        s_cmp_eq_u32 s{sj}, 0
        s_cbranch_scc0 L_aux5
        v_mov_b32 v18, 0
        v_lshlrev_b32 v19, 2, v{vLane}
        v_add_u32 v19, {XCH}, v19
        v_cmp_gt_u32 vcc, 48, v{vLane}
        s_and_saveexec_b64 s[60:61], vcc
        ds_write_b32 v19, v18
        s_mov_b64 exec, s[60:61]
        s_branch L_aux_go
        L_aux5:
        s_cmp_eq_u32 s{sj}, 3
        s_cbranch_scc1 L_aux_go
        v_mov_b32 v24, 0x3f803f80
        v_add_u32 v19, {XL + 4096}, v{vL16}
        s_cmp_eq_u32 s{sj}, 1
        s_cbranch_scc1 L_aux_w
        v_mov_b32 v24, 0
        v_add_u32 v19, {ZL}, v{vL16}
        L_aux_w:
        v_mov_b32 v25, v24
        v_mov_b32 v26, v24
        v_mov_b32 v27, v24
        ds_write_b128 v19, v[24:27]
        L_aux_go:
        s_waitcnt lgkmcnt(0)
        s_barrier
        ''')
    for idx, (kind, n) in enumerate(seq):
        if kind == 'x':
            a(f's_mov_b32 s56, s58\ns_add_u32 m0, s58, {XL}')
        elif kind == 'wq':
            a(f's_lshl_b32 s56, s{sj}, 16\ns_add_u32 s56, s56, {4 * 65536 * n}\ns_add_u32 m0, s58, {W_OFF + 4096 * n}')
        else:
            reg = K_OFF if kind == 'K' else V_OFF
            a(f's_add_u32 s55, s54, {n}\ns_and_b32 s55, s55, 15\ns_lshl_b32 s55, s55, 12\ns_add_u32 s56, s55, s58\ns_add_u32 m0, s56, {reg}')
        if idx >= W:
            a(f's_waitcnt vmcnt({W - 1})')
            if (idx - W) in miles: progress(miles[idx - W])
        if kind == 'x': a(f'buffer_load_dwordx4 v{vL16}, s[{sSX}:{sSX + 3}], s56 offen lds')
        elif kind == 'wq': a(f'buffer_load_dwordx4 v28, s[{sSW}:{sSW + 3}], s56 offen {NT} lds')
        elif kind == 'K': a(f'buffer_load_dwordx4 v{vK}, s[{sSK}:{sSK + 3}], s56 offen {NT} lds')
        else: a(f'buffer_load_dwordx4 v{vV}, s[{sSV}:{sSV + 3}], s56 offen {NT} lds')
        if idx == 0:
            a(f'''
            s_bitcmp1_b32 s{sj}, 0
            s_cselect_b64 s[60:61], -1, 0
            v_cndmask_b32 v28, v{vWQ}, v{vWQ + 1}, s[60:61]
            ''')
        if idx == W - 1:
            lds_init()
    last = len(seq) - 1
    for k in sorted(miles):
        if k + W > last:
            a(f's_waitcnt vmcnt({last - k})')
            progress(miles[k])
    a.stamp('ldrEnd')
    a(f'''
    s_waitcnt lgkmcnt(0)
    s_load_dword s{sep}, s[{sWS}:{sWS + 1}], 0
    s_branch L_tail_entry
    ''')

    a('L_comp:')
    vCol, vG = 7, 8
    a(f'''
    v_and_b32 v{vCol}, 15, v{vLane}
    v_lshrrev_b32 v{vG}, 4, v{vLane}
    v_cmp_eq_u32 s[60:61], 1, v{vCol}
    v_cmp_eq_u32 s[62:63], 2, v{vCol}
    v_cmp_eq_u32 s[64:65], 3, v{vCol}
    v_min_u32 v9, 4, v{vCol}
    v_lshlrev_b32 v9, 10, v9
    v_lshl_add_u32 v9, v{vG}, 4, v9
    v_add_u32 v9, {XL}, v9
    s_barrier
    ''')
    vXB = 9
    vWT = 10
    a(f'''
    v_bfe_u32 v11, v{vLane}, 2, 2
    v_and_b32 v12, 3, v{vLane}
    v_lshl_add_u32 v13, v{vG}, 3, v11
    v_lshlrev_b32 v13, 7, v13
    v_lshrrev_b32 v14, 1, v11
    v_and_b32 v15, 1, v{vG}
    v_lshl_add_u32 v14, v15, 1, v14
    v_lshlrev_b32 v14, 1, v14
    v_lshrrev_b32 v15, 1, v12
    s_lshl_b32 s36, s{swave}, 1
    v_add_u32 v15, s36, v15
    v_xor_b32 v15, v15, v14
    v_lshl_add_u32 v13, v15, 4, v13
    v_and_b32 v12, 1, v12
    v_lshl_add_u32 v{vWT}, v12, 3, v13
    v_add_u32 v{vWT}, {W_OFF}, v{vWT}
    ''')
    wait_progress(1)
    a.stamp('x')
    vXo, vDg = 16, 80
    for t in range(16): a(f'ds_read_b128 v[{vXo + 4 * t}:{vXo + 4 * t + 3}], v{vXB} offset:{64 * t}')
    a(f'v_mov_b32 v{vDg}, 0\nv_mov_b32 v{vDg + 1}, 0\nv_mov_b32 v{vDg + 2}, 0\nv_mov_b32 v{vDg + 3}, 0')
    a('s_waitcnt lgkmcnt(0)')
    for t in range(16):
        a(f'v_mfma_f32_16x16x32_bf16 v[{vDg}:{vDg + 3}], v[{vXo + 4 * t}:{vXo + 4 * t + 3}], v[{vXo + 4 * t}:{vXo + 4 * t + 3}], v[{vDg}:{vDg + 3}]')
    a(f'''
    s_lshl_b32 s36, s{shi}, 8
    v_add_u32 v11, s36, v{vXB}
    ''')
    vXq = 16
    for t in range(4): a(f'ds_read_b128 v[{vXq + 4 * t}:{vXq + 4 * t + 3}], v11 offset:{64 * t}')
    vMu, vRs = 84, 85
    a(f'''
    v_cndmask_b32 v12, v{vDg}, v{vDg + 1}, s[60:61]
    v_cndmask_b32 v12, v12, v{vDg + 2}, s[62:63]
    v_cndmask_b32 v12, v12, v{vDg + 3}, s[64:65]
    v_and_b32 v13, 3, v{vLane}
    v_lshlrev_b32 v13, 2, v13
    v_add_u32 v14, 64, v13
    ds_bpermute_b32 v12, v13, v12
    ds_bpermute_b32 v15, v14, v{vDg}
    s_waitcnt lgkmcnt(0)
    v_mul_f32 v{vMu}, {1.0 / 512}, v15
    v_mul_f32 v12, {1.0 / 512}, v12
    v_fma_f32 v12, -v{vMu}, v{vMu}, v12
    v_add_f32 v12, 0x{f2u(1e-5):08x}, v12
    v_rsq_f32 v12, v12
    v_mul_f32 v{vRs}, 0x{f2u(SCALE):08x}, v12
    ''')
    wait_progress(2)
    a.stamp('wq')
    vWa, vD = 32, 64
    for t in range(4):
        a(f'ds_read_b64_tr_b16 v[{vWa + 4 * t}:{vWa + 4 * t + 1}], v{vWT} offset:{4096 * t}')
        a(f'ds_read_b64_tr_b16 v[{vWa + 4 * t + 2}:{vWa + 4 * t + 3}], v{vWT} offset:{4096 * t + 512}')
    a(f'v_mov_b32 v{vD}, 0\nv_mov_b32 v{vD + 1}, 0\nv_mov_b32 v{vD + 2}, 0\nv_mov_b32 v{vD + 3}, 0')
    a('s_waitcnt lgkmcnt(0)')
    for t in range(4):
        a(f'v_mfma_f32_16x16x32_bf16 v[{vD}:{vD + 3}], v[{vWa + 4 * t}:{vWa + 4 * t + 3}], v[{vXq + 4 * t}:{vXq + 4 * t + 3}], v[{vD}:{vD + 3}]')
    a(f'''
    s_lshl_b32 s36, s{sx}, 15
    s_lshl_b32 s37, s{shi}, 11
    s_add_u32 s36, s36, s37
    s_lshl_b32 s37, s{slo}, 8
    s_add_u32 s36, s36, s37
    s_lshl_b32 s37, s{swave}, 6
    s_add_u32 s36, s36, s37
    s_add_u32 s36, s36, {QP}
    v_lshlrev_b32 v11, 13, v{vCol}
    v_lshl_add_u32 v11, v{vG}, 4, v11
    v_add_u32 v11, s36, v11
    s_add_u32 s{sep}, s{sep}, 1
    s_and_b32 s{stag}, s{sep}, 0xff
    s_xor_b32 s37, s{stag}, 0x80
    v_mov_b32 v{vTag}, s37
    ''')
    for r in range(4):
        a(f'v_mov_b32_dpp v{68 + r}, v{vD + r} row_newbcast:4 row_mask:0xf bank_mask:0xf')
    for r in range(4):
        a(f'v_fma_f32 v{vD + r}, -v{vMu}, v{68 + r}, v{vD + r}')
    for r in range(4):
        a(f'v_mul_f32 v{vD + r}, v{vRs}, v{vD + r}')
    tagput(range(vD, vD + 4))
    a(f'''
    v_cmp_gt_u32 vcc, 4, v{vCol}
    s_and_saveexec_b64 s[36:37], vcc
    global_store_dwordx4 v11, v[{vD}:{vD + 3}], s[{sWS}:{sWS + 1}] {ST_Q}
    s_mov_b64 exec, s[36:37]
    ''')
    a.stamp('qpub')
    if opt.get('touch', 1):
        a(f'''
        s_cmp_eq_u32 s{swave}, 0
        s_cbranch_scc0 L_notouch
        s_lshl_b32 s36, s{sx}, 2
        s_add_u32 s36, s36, s{shi}
        s_lshl_b32 s36, s36, 14
        s_lshl_b32 s37, s{slo}, 11
        s_add_u32 s36, s36, s37
        s_add_u32 s36, s36, {OP}
        v_lshlrev_b32 v12, 6, v{vLane}
        v_add_u32 v13, s36, v12
        s_lshl_b32 s36, s{sx}, 9
        s_add_u32 s36, s36, {LSE} - 2048
        v_add_u32 v14, s36, v12
        v_cmp_gt_u32 vcc, 32, v{vLane}
        v_cndmask_b32 v13, v14, v13, vcc
        v_cmp_gt_u32 vcc, 40, v{vLane}
        s_and_saveexec_b64 s[36:37], vcc
        global_load_dword v14, v13, s[{sWS}:{sWS + 1}]
        s_mov_b64 exec, s[36:37]
        L_notouch:
        ''')
    a(f'''
    s_lshl_b32 s36, s{sx}, 15
    s_lshl_b32 s37, s{shi}, 13
    s_add_u32 s36, s36, s37
    s_lshl_b32 s37, s{swave}, 9
    s_add_u32 s36, s36, s37
    s_add_u32 s36, s36, {QP}
    v_lshrrev_b32 v11, 5, v{vLane}
    v_and_b32 v12, 31, v{vLane}
    v_lshlrev_b32 v11, 12, v11
    v_lshl_add_u32 v11, v12, 4, v11
    v_add_u32 v11, s36, v11
    ''')
    L = a.lab('gq')
    for _ in range(opt.get('qpre', 0)): a('s_sleep 32')
    a(f'''
    {L}:
    global_load_dwordx4 v[16:19], v11, s[{sWS}:{sWS + 1}] {LD}
    global_load_dwordx4 v[20:23], v11, s[{sWS}:{sWS + 1}] offset:2048 {LD}
    s_waitcnt vmcnt(0)
    ''')
    tagcheck(list(range(16, 24)), L, opt.get('qsleep', 0))
    a.stamp('qgath')
    a(f'v_mov_b32 v{vTag}, s{stag}')
    for e in range(4): a(f'v_add_f32 v{16 + e}, v{16 + e}, v{20 + e}')
    multi(ADD32, range(16, 20), range(20, 24))
    a(f'''
    v_cvt_pk_bf16_f32 v16, v16, v17
    v_cvt_pk_bf16_f32 v17, v18, v19
    s_mul_i32 s36, s{swave}, 272
    s_add_u32 s36, s36, {QL}
    v_lshlrev_b32 v12, 3, v12
    v_add_u32 v12, s36, v12
    ds_write_b64 v12, v[16:17]
    ''')
    wavesync(0)
    vQ = 16
    a(f'''
    v_min_u32 v11, 3, v{vCol}
    v_mul_u32_u24 v12, 272, v11
    v_lshl_add_u32 v12, v{vG}, 4, v12
    v_add_u32 v12, {QL}, v12
    ''')
    for t in range(4): a(f'ds_read_b128 v[{vQ + 4 * t}:{vQ + 4 * t + 3}], v12 offset:{64 * t}')
    vKA = 32
    a(f'''
    s_lshl_b32 s36, s{swave}, 14
    v_lshlrev_b32 v13, 8, v{vCol}
    v_add_u32 v13, s36, v13
    ''')
    for t in range(4):
        a(f'''
        v_add_u32 v14, {4 * t}, v{vG}
        v_xor_b32 v14, v14, v{vCol}
        v_lshl_add_u32 v{vKA + t}, v14, 4, v13
        ''')
    wait_progress(3)
    a.stamp('Kland')
    vKo, vS = 96, 40
    for tile in range(4):
        for t in range(4):
            a(f'ds_read_b128 v[{vKo + 16 * tile + 4 * t}:{vKo + 16 * tile + 4 * t + 3}], v{vKA + t} offset:{4096 * tile}')
    for r in range(16): a(f'v_mov_b32 v{vS + r}, 0')
    a('s_waitcnt lgkmcnt(0)')
    for t in range(4):
        for tile in range(4):
            a(f'v_mfma_f32_16x16x32_bf16 v[{vS + 4 * tile}:{vS + 4 * tile + 3}], v[{vKo + 16 * tile + 4 * t}:{vKo + 16 * tile + 4 * t + 3}], v[{vQ + 4 * t}:{vQ + 4 * t + 3}], v[{vS + 4 * tile}:{vS + 4 * tile + 3}]')
    vM = 56
    a(f'v_max3_f32 v{vM}, v{vS}, v{vS + 1}, v{vS + 2}')
    for r in range(3, 15, 2): a(f'v_max3_f32 v{vM}, v{vM}, v{vS + r}, v{vS + r + 1}')
    a(f'v_max_f32 v{vM}, v{vM}, v{vS + 15}')
    xmax16(vM, 57); xmax32(vM, 57)
    vXA = 58
    a(f'''
    v_min_u32 v11, 3, v{vCol}
    v_lshlrev_b32 v{vXA}, 4, v11
    v_add_u32 v{vXA}, {XCH}, v{vXA}
    s_lshl_b32 s36, s{swave}, 2
    v_add_u32 v59, s36, v{vXA}
    v_cmp_gt_u32 vcc, 4, v{vLane}
    s_and_saveexec_b64 s[36:37], vcc
    ds_write_b32 v59, v{vM}
    s_mov_b64 exec, s[36:37]
    ''')
    wavesync(1)
    a(f'''
    ds_read_b128 v[60:63], v{vXA}
    s_waitcnt lgkmcnt(0)
    v_max3_f32 v{vM}, v60, v61, v62
    v_max_f32 v{vM}, v{vM}, v63
    ''')
    for r in range(16): a(f'v_sub_f32 v{vS + r}, v{vS + r}, v{vM}')
    for r in range(16): a(f'v_exp_f32 v{vS + r}, v{vS + r}')
    vL = 57
    a(f'v_add_f32 v{vL}, v{vS}, v{vS + 1}')
    for r in range(2, 16): a(f'v_add_f32 v{vL}, v{vL}, v{vS + r}')
    for r in range(8): a(f'v_cvt_pk_bf16_f32 v{64 + r}, v{vS + 2 * r}, v{vS + 2 * r + 1}')
    xsum16(vL, 60); xsum32(vL, 60)
    a(f'''
    v_mul_u32_u24 v61, 528, v11
    v_lshl_add_u32 v61, v{vG}, 3, v61
    s_lshl_b32 s36, s{swave}, 7
    s_add_u32 s36, s36, {PL}
    v_add_u32 v61, s36, v61
    v_cmp_gt_u32 vcc, 4, v{vCol}
    s_and_saveexec_b64 s[36:37], vcc
    ''')
    for tile in range(4): a(f'ds_write_b64 v61, v[{64 + 2 * tile}:{65 + 2 * tile}] offset:{32 * tile}')
    a(f'''
    s_mov_b64 exec, s[36:37]
    v_cmp_gt_u32 vcc, 4, v{vLane}
    s_and_saveexec_b64 s[36:37], vcc
    ds_write_b32 v59, v{vL} offset:64
    s_mov_b64 exec, s[36:37]
    ''')
    wavesync(2)
    a(f'''
    ds_read_b128 v[60:63], v{vXA} offset:64
    v_mul_u32_u24 v64, 528, v11
    v_lshl_add_u32 v64, v{vG}, 4, v64
    v_add_u32 v64, {PL}, v64
    ''')
    vP = 96
    for tau in range(8):
        a(f'''
        s_add_u32 s36, s{slo}, {tau}
        s_and_b32 s36, s36, 7
        s_lshl_b32 s36, s36, 6
        v_add_u32 v65, s36, v64
        ds_read_b128 v[{vP + 4 * tau}:{vP + 4 * tau + 3}], v65
        ''')
    vRL = 56
    a(f'''
    s_waitcnt lgkmcnt(0)
    v_add_f32 v60, v60, v61
    v_add_f32 v62, v62, v63
    v_add_f32 v60, v60, v62
    v_log_f32 v61, v60
    v_rcp_f32 v57, v60
    v_add_f32 v61, v61, v{vM}
    ''')
    vRL = 57
    a(f'''
    s_cmp_eq_u32 s{swave}, 0
    s_cbranch_scc0 L_nolse
    v_mov_b32_dpp v68, v61 quad_perm:[0,0,0,0] row_mask:0xf bank_mask:0xf
    v_mov_b32_dpp v69, v61 quad_perm:[1,1,1,1] row_mask:0xf bank_mask:0xf
    v_mov_b32_dpp v70, v61 quad_perm:[2,2,2,2] row_mask:0xf bank_mask:0xf
    v_mov_b32_dpp v71, v61 quad_perm:[3,3,3,3] row_mask:0xf bank_mask:0xf
    s_lshl_b32 s36, s{sx}, 9
    s_lshl_b32 s37, s{sy}, 4
    s_add_u32 s36, s36, s37
    s_add_u32 s36, s36, {LSE}
    v_mov_b32 v62, s36
    ''')
    tagput(range(68, 72))
    a(f'''
    s_mov_b64 exec, 1
    global_store_dwordx4 v62, v[68:71], s[{sWS}:{sWS + 1}] {ST_A}
    s_mov_b64 exec, -1
    L_nolse:
    ''')
    a.stamp('smax')
    vVA = 72
    a(f'''
    v_bfe_u32 v11, v{vLane}, 2, 2
    v_and_b32 v12, 3, v{vLane}
    v_lshl_add_u32 v13, v{vG}, 3, v11
    v_lshlrev_b32 v13, 8, v13
    v_and_b32 v14, 1, v{vG}
    v_lshl_add_u32 v14, v14, 2, v11
    v_lshlrev_b32 v14, 1, v14
    v_lshrrev_b32 v15, 1, v12
    s_lshl_b32 s36, s{swave}, 2
    v_add_u32 v15, s36, v15
    v_and_b32 v12, 1, v12
    v_lshl_add_u32 v13, v12, 3, v13
    v_add_u32 v13, {V_OFF}, v13
    v_xor_b32 v12, v15, v14
    v_lshl_add_u32 v{vVA}, v12, 4, v13
    v_add_u32 v15, 2, v15
    v_xor_b32 v12, v15, v14
    v_lshl_add_u32 v{vVA + 1}, v12, 4, v13
    ''')
    vO = 76
    for r in range(8): a(f'v_mov_b32 v{vO + r}, 0')
    a(f'''
    s_lshl_b32 s36, s{sx}, 16
    s_lshl_b32 s37, s{sy}, 9
    s_add_u32 s36, s36, s37
    s_lshl_b32 s37, s{swave}, 7
    s_add_u32 s36, s36, s37
    s_add_u32 s36, s36, {OP}
    v_lshlrev_b32 v74, 14, v{vCol}
    v_lshl_add_u32 v74, v{vG}, 4, v74
    v_add_u32 v74, s36, v74
    ''')
    vVo = 128
    def pv(taus):
        for tau in taus:
            k = tau % 2
            base = vVo + 8 * (tau - taus[0])
            a(f'''
            s_add_u32 s36, s{slo}, {tau}
            s_and_b32 s36, s36, 7
            s_lshl_b32 s36, s36, 13
            v_add_u32 v14, s36, v{vVA}
            v_add_u32 v15, s36, v{vVA + 1}
            ds_read_b64_tr_b16 v[{base}:{base + 1}], v14
            ds_read_b64_tr_b16 v[{base + 2}:{base + 3}], v14 offset:1024
            ds_read_b64_tr_b16 v[{base + 4}:{base + 5}], v15
            ds_read_b64_tr_b16 v[{base + 6}:{base + 7}], v15 offset:1024
            ''')
        a('s_waitcnt lgkmcnt(0)')
        for tau in taus:
            base = vVo + 8 * (tau - taus[0])
            for dt in range(2):
                a(f'v_mfma_f32_16x16x32_bf16 v[{vO + 4 * dt}:{vO + 4 * dt + 3}], v[{base + 4 * dt}:{base + 4 * dt + 3}], v[{vP + 4 * tau}:{vP + 4 * tau + 3}], v[{vO + 4 * dt}:{vO + 4 * dt + 3}]')
    wait_progress(4); pv([0, 1, 2, 3])
    wait_progress(5); pv([4, 5])
    wait_progress(6); pv([6])
    wait_progress(7); a.stamp('Vland'); pv([7])
    for r in range(8): a(f'v_mul_f32 v{vO + r}, v{vRL}, v{vO + r}')
    tagput(range(vO, vO + 8))
    a(f'''
    v_cmp_gt_u32 vcc, 4, v{vCol}
    s_and_saveexec_b64 s[36:37], vcc
    global_store_dwordx4 v74, v[{vO}:{vO + 3}], s[{sWS}:{sWS + 1}] {ST_A}
    global_store_dwordx4 v74, v[{vO + 4}:{vO + 7}], s[{sWS}:{sWS + 1}] offset:64 {ST_A}
    s_mov_b64 exec, s[36:37]
    ''')
    a.stamp('opub')
    a(f'''
    s_lshl_b32 s40, s{sx}, 2
    s_add_u32 s40, s40, s{shi}
    s_lshl_b32 s41, s40, 17
    s_lshl_b32 s42, s{slo}, 7
    s_add_u32 s41, s41, s42
    ''')
    srd(44, sWO_, 41, total=4 << 20)
    a(f'''
    v_lshrrev_b32 v11, 3, v{vLane}
    v_and_b32 v12, 7, v{vLane}
    v_bfe_u32 v13, v{vLane}, 4, 1
    v_lshlrev_b32 v13, 1, v13
    v_xor_b32 v12, v12, v13
    v_lshlrev_b32 v11, 10, v11
    v_lshl_add_u32 v14, v12, 4, v11
    v_xor_b32 v12, 4, v12
    v_lshl_add_u32 v15, v12, 4, v11
    s_lshl_b32 s42, s{swave}, 15
    s_lshl_b32 s43, s{swave}, 12
    s_add_u32 s43, s43, {W_OFF}
    ''')
    for n in range(4):
        a(f'''
        s_add_u32 s48, s42, {8192 * n}
        s_add_u32 m0, s43, {1024 * n}
        buffer_load_dwordx4 v{14 + (n & 1)}, s[44:47], s48 offen {NT} lds
        ''')
    a(f'''
    s_lshl_b32 s41, s40, 14
    s_lshl_b32 s42, s{swave}, 7
    s_add_u32 s41, s41, s42
    s_add_u32 s41, s41, {OP}
    v_and_b32 v11, 7, v{vLane}
    v_bfe_u32 v12, v{vLane}, 3, 2
    v_lshrrev_b32 v13, 5, v{vLane}
    v_lshlrev_b32 v14, 12, v12
    v_lshl_add_u32 v14, v13, 11, v14
    v_lshl_add_u32 v14, v11, 4, v14
    v_add_u32 v14, s41, v14
    s_lshl_b32 s41, s{sx}, 9
    s_lshl_b32 s42, s{shi}, 2
    s_add_u32 s41, s41, s42
    s_add_u32 s41, s41, {LSE}
    v_lshlrev_b32 v15, 7, v12
    v_lshl_add_u32 v15, v13, 6, v15
    v_add_u32 v15, s41, v15
    ''')
    L = a.lab('ga')
    if opt.get('apre', 0): a(f"s_sleep {opt['apre']}")
    def a_loads():
        for i in range(4): a(f'global_load_dword v{32 + i}, v15, s[{sWS}:{sWS + 1}] offset:{16 * i} {LD}')
        for i in range(4): a(f'global_load_dwordx4 v[{16 + 4 * i}:{19 + 4 * i}], v14, s[{sWS}:{sWS + 1}] offset:{512 * i} {LD}')
    if opt.get('early_gu', 0):
        a_loads()
        a(f'''
        s_cmp_ge_u32 s{sy}, 28
        s_cbranch_scc1 L_nogu
        ''')
        gu_dma(36)
        a(f'''
        s_waitcnt vmcnt(6)
        s_branch {L}_chk
        L_nogu:
        s_waitcnt vmcnt(0)
        s_branch {L}_chk
        ''')
    a(f'{L}:')
    a_loads()
    a('s_waitcnt vmcnt(0)')
    a(f'{L}_chk:')
    tagcheck(list(range(16, 36)), L, opt.get('asleep', 0))
    a.stamp('gA')
    a(f'''
    v_max3_f32 v36, v32, v33, v34
    v_max_f32 v36, v36, v35
    ''')
    xmax32(36, 37)
    for i in range(4): a(f'v_sub_f32 v{32 + i}, v{32 + i}, v36')
    for i in range(4): a(f'v_exp_f32 v{32 + i}, v{32 + i}')
    a('v_add_f32 v36, v32, v33\nv_add_f32 v37, v34, v35\nv_add_f32 v36, v36, v37')
    xsum32(36, 37)
    a('v_rcp_f32 v36, v36')
    for e in range(4): a(f'v_mul_f32 v{40 + e}, v32, v{16 + e}')
    for i in range(1, 4):
        for e in range(4): a(f'v_fmac_f32 v{40 + e}, v{32 + i}, v{16 + 4 * i + e}')
    multi(ADD32, range(40, 44), range(44, 48))
    for e in range(4): a(f'v_mul_f32 v{40 + e}, v36, v{40 + e}')
    a(f'''
    v_cvt_pk_bf16_f32 v40, v40, v41
    v_cvt_pk_bf16_f32 v41, v42, v43
    v_mul_u32_u24 v12, 272, v12
    v_lshl_add_u32 v12, v11, 3, v12
    s_lshl_b32 s41, s{swave}, 6
    s_add_u32 s41, s41, {OL}
    v_add_u32 v12, s41, v12
    ds_write_b64 v12, v[40:41]
    s_waitcnt lgkmcnt(0)
    ''')
    a('L_tail_entry:')
    a.stamp('preB1')
    a('s_barrier')
    a.stamp('B1')
    a(f'''
    s_cmp_ge_u32 s{swave}, 4
    s_cbranch_scc1 L_s2_done
    ''')
    a(f'''
    v_min_u32 v11, 3, v{vCol}
    v_mul_u32_u24 v12, 272, v11
    v_lshl_add_u32 v12, v{vG}, 4, v12
    v_add_u32 v12, {OL}, v12
    ''')
    for t in range(4):
        a(f'ds_read_b64_tr_b16 v[{32 + 4 * t}:{33 + 4 * t}], v{vWT} offset:{4096 * t}')
        a(f'ds_read_b64_tr_b16 v[{34 + 4 * t}:{35 + 4 * t}], v{vWT} offset:{4096 * t + 512}')
        a(f'ds_read_b128 v[{16 + 4 * t}:{19 + 4 * t}], v12 offset:{64 * t}')
    a(f'''
    v_mov_b32 v64, 0
    v_mov_b32 v65, 0
    v_mov_b32 v66, 0
    v_mov_b32 v67, 0
    s_lshl_b32 s41, s{slo}, 10
    s_lshl_b32 s42, s40, 13
    s_add_u32 s41, s41, s42
    s_lshl_b32 s42, s{swave}, 8
    s_add_u32 s41, s41, s42
    s_add_u32 s41, s41, {QP}
    v_lshlrev_b32 v13, 4, v{vCol}
    v_lshl_add_u32 v13, v{vG}, 6, v13
    v_add_u32 v13, s41, v13
    s_waitcnt lgkmcnt(0)
    ''')
    for t in range(4):
        a(f'v_mfma_f32_16x16x32_bf16 v[64:67], v[{32 + 4 * t}:{35 + 4 * t}], v[{16 + 4 * t}:{19 + 4 * t}], v[64:67]')
    tagput(range(64, 68))
    a(f'''
    v_cmp_gt_u32 vcc, 4, v{vCol}
    s_and_saveexec_b64 s[36:37], vcc
    global_store_dwordx4 v13, v[64:67], s[{sWS}:{sWS + 1}] {ST_B}
    s_mov_b64 exec, s[36:37]
    ''')
    a.stamp('hpub')
    a('L_s2_done:')
    a(f"""
    s_cmp_lt_u32 s{swave}, 4
    s_cbranch_scc1 L_have_tag
    s_waitcnt lgkmcnt(0)
    s_add_u32 s{sep}, s{sep}, 1
    s_and_b32 s{stag}, s{sep}, 0xff
    v_mov_b32 v{vTag}, s{stag}
    v_and_b32 v{vCol}, 15, v{vLane}
    v_lshrrev_b32 v{vG}, 4, v{vLane}
    L_have_tag:
    s_cmp_ge_u32 s{sy}, 28
    s_cbranch_scc1 L_final
    ; S3b role: f = 7x + (y>>2), m = y&3
    s_mul_i32 s43, s{sx}, 7
    s_lshr_b32 s42, s{sy}, 2
    s_add_u32 s43, s43, s42
    s_and_b32 s40, s{sy}, 3
    """)
    if not opt.get('early_gu', 0):
        a(f"""
        s_cmp_ge_u32 s{swave}, 4
        s_cbranch_scc1 L_nodma
        """)
        gu_dma(11)
    a('L_nodma:')
    a(f"""
    s_lshl_b32 s41, s{sx}, 10
    s_lshl_b32 s42, s{swave}, 7
    s_add_u32 s41, s41, s42
    s_add_u32 s41, s41, {QP}
    v_lshrrev_b32 v11, 3, v{vLane}
    v_and_b32 v12, 7, v{vLane}
    v_lshlrev_b32 v11, 13, v11
    v_lshl_add_u32 v11, v12, 4, v11
    v_add_u32 v40, s41, v11
    v_add_u32 v41, 0x10000, v40
    v_add_u32 v42, 0x20000, v40
    v_add_u32 v43, 0x30000, v40
    v_and_b32 v13, 3, v{vLane}
    v_bfe_u32 v14, v{vLane}, 2, 1
    v_lshlrev_b32 v15, 10, v13
    v_lshl_add_u32 v15, v14, 3, v15
    s_lshl_b32 s41, s{sx}, 7
    s_lshl_b32 s42, s{swave}, 4
    s_add_u32 s41, s41, s42
    s_add_u32 s41, s41, {XL}
    v_add_u32 v15, s41, v15
    ds_read_b64 v[44:45], v15
    v_mul_u32_u24 v11, 144, v13
    v_lshl_add_u32 v11, v14, 3, v11
    s_add_u32 s42, s42, {HL}
    v_add_u32 v11, s42, v11
    """)
    a(f"""
    v_bfe_u32 v20, v{vLane}, 2, 2
    v_and_b32 v21, 3, v{vLane}
    v_lshl_add_u32 v46, v{vG}, 3, v20
    v_lshlrev_b32 v46, 7, v46
    v_lshrrev_b32 v23, 1, v20
    v_and_b32 v24, 1, v{vG}
    v_lshl_add_u32 v23, v24, 1, v23
    v_lshlrev_b32 v23, 1, v23
    v_lshrrev_b32 v24, 1, v21
    s_and_b32 s41, s{swave}, 3
    s_lshl_b32 s42, s41, 1
    v_add_u32 v24, s42, v24
    v_xor_b32 v24, v24, v23
    v_lshl_add_u32 v46, v24, 4, v46
    v_and_b32 v21, 1, v21
    v_lshl_add_u32 v46, v21, 3, v46
    v_mov_b32 v20, {ZL}
    v_mov_b32 v21, {XL + 4096}
    v_mul_u32_u24 v22, 144, v{vCol}
    v_add_u32 v22, {HL}, v22
    v_cmp_eq_u32 vcc, 8, v{vCol}
    v_cndmask_b32 v47, v20, v21, vcc
    v_cmp_gt_u32 vcc, 4, v{vCol}
    v_cndmask_b32 v47, v47, v22, vcc
    v_lshl_add_u32 v47, v{vG}, 4, v47
    v_cmp_eq_u32 vcc, 9, v{vCol}
    v_cndmask_b32 v48, v20, v21, vcc
    v_subrev_u32 v22, {4 * 144}, v22
    v_lshrrev_b32 v23, 2, v{vCol}
    v_cmp_eq_u32 vcc, 1, v23
    v_cndmask_b32 v48, v48, v22, vcc
    v_lshl_add_u32 v48, v{vG}, 4, v48
    s_lshl_b32 s52, s{sy}, 2
    s_add_u32 s52, s52, s41
    s_mul_i32 s52, s52, 5120
    s_mul_i32 s53, s{sx}, 640
    s_add_u32 s52, s52, s53
    s_add_u32 s52, s52, {GP}
    v_lshlrev_b32 v22, 4, v{vCol}
    v_lshl_add_u32 v23, v{vG}, 7, v22
    v_lshl_add_u32 v24, v{vG}, 5, v22
    v_add_u32 v24, {512 - 128}, v24
    v_cmp_gt_u32 vcc, 8, v{vCol}
    v_cndmask_b32 v49, v24, v23, vcc
    v_add_u32 v49, s52, v49
    """)
    L = a.lab('gb')
    if opt.get('bpre', 0): a(f"s_sleep {opt['bpre']}")
    a(f'{L}:')
    for i in range(4): a(f'global_load_dwordx4 v[{16 + 4 * i}:{19 + 4 * i}], v{40 + i}, s[{sWS}:{sWS + 1}] {LD}')
    a('s_waitcnt vmcnt(0)')
    tagcheck(list(range(16, 32)), L, opt.get('bsleep', 0))
    a.stamp('gB')
    for e in range(4): a(f'v_add_f32 v{16 + e}, v{16 + e}, v{20 + e}')
    for e in range(4): a(f'v_add_f32 v{24 + e}, v{24 + e}, v{28 + e}')
    for e in range(4): a(f'v_add_f32 v{16 + e}, v{16 + e}, v{24 + e}')
    ror_add(range(16, 20), 8)
    multi(ADD16, range(16, 20), range(20, 24))
    multi(ADD32, range(16, 20), range(20, 24))
    a(f"""
    s_waitcnt lgkmcnt(0)
    v_lshlrev_b32 v20, 16, v44
    v_and_b32 v21, 0xffff0000, v44
    v_lshlrev_b32 v22, 16, v45
    v_and_b32 v23, 0xffff0000, v45
    """)
    for e in range(4): a(f'v_add_f32 v{16 + e}, v{16 + e}, v{20 + e}')
    a(f"""
    v_cvt_pk_bf16_f32 v16, v16, v17
    v_cvt_pk_bf16_f32 v17, v18, v19
    s_mov_b64 exec, 0xff
    ds_write_b64 v11, v[16:17]
    s_mov_b64 exec, -1
    s_waitcnt lgkmcnt(0)
    """)
    a.stamp('preB2')
    a('s_barrier')
    a.stamp('B2')
    a(f"""
    s_cmp_ge_u32 s{swave}, 4
    s_cbranch_scc1 L_s3a_done
    """)
    for t in range(2):
        a(f'ds_read_b128 v[{16 + 4 * t}:{19 + 4 * t}], v47 offset:{64 * t}')
        a(f'ds_read_b128 v[{24 + 4 * t}:{27 + 4 * t}], v48 offset:{64 * t}')
        for mat, off in enumerate((GATE_OFF, UP_OFF)):
            a(f'ds_read_b64_tr_b16 v[{32 + 8 * mat + 4 * t}:{33 + 8 * mat + 4 * t}], v46 offset:{off + 4096 * t}')
            a(f'ds_read_b64_tr_b16 v[{34 + 8 * mat + 4 * t}:{35 + 8 * mat + 4 * t}], v46 offset:{off + 4096 * t + 512}')
    a(f"""
    v_mov_b32 v64, 0
    v_mov_b32 v65, 0
    v_mov_b32 v66, 0
    v_mov_b32 v67, 0
    v_mov_b32 v68, 0
    v_mov_b32 v69, 0
    v_mov_b32 v70, 0
    v_mov_b32 v71, 0
    s_lshl_b32 s53, s{sy}, 11
    s_lshl_b32 s54, s{sx}, 7
    s_add_u32 s53, s53, s54
    s_add_u32 s53, s53, {MO}
    v_lshlrev_b32 v50, 4, v{vCol}
    v_lshl_add_u32 v50, v{vG}, 5, v50
    v_add_u32 v50, s53, v50
    s_waitcnt lgkmcnt(0)
    """)
    a.stamp('s3mf')
    for t in range(2):
        a(f'v_mfma_f32_16x16x32_bf16 v[64:67], v[{32 + 4 * t}:{35 + 4 * t}], v[{16 + 4 * t}:{19 + 4 * t}], v[64:67]')
    for t in range(2):
        a(f'v_mfma_f32_16x16x32_bf16 v[64:67], v[{40 + 4 * t}:{43 + 4 * t}], v[{24 + 4 * t}:{27 + 4 * t}], v[64:67]')
    for t in range(2):
        a(f'v_mfma_f32_16x16x32_bf16 v[68:71], v[{16 + 4 * t}:{19 + 4 * t}], v[{16 + 4 * t}:{19 + 4 * t}], v[68:71]')
    tagput(range(64, 68))
    a(f"""
    v_cmp_gt_u32 vcc, 10, v{vCol}
    s_and_saveexec_b64 s[36:37], vcc
    global_store_dwordx4 v49, v[64:67], s[{sWS}:{sWS + 1}] {ST_G}
    s_mov_b64 exec, s[36:37]
    s_cmp_eq_u32 s{swave}, 0
    s_cbranch_scc0 L_nomom
    """)
    tagput(range(68, 72))
    a(f"""
    v_and_b32 v51, 0x1c, v{vLane}
    v_cmp_eq_u32 vcc, 0, v51
    s_and_saveexec_b64 s[36:37], vcc
    global_store_dwordx4 v50, v[68:71], s[{sWS}:{sWS + 1}] {ST_G}
    global_store_dwordx4 v50, v[68:71], s[{sWS}:{sWS + 1}] offset:1024 {ST_G}
    s_mov_b64 exec, s[36:37]
    L_nomom:
    """)
    a.stamp('gpub')
    a('L_s3a_done:')
    a(f"""
    ; GQ + ((f>>1)*4 + 2*(f&1) + (w>>2))*5120 + i*640 + (w&3)*128 + (l&7)*16
    s_lshl_b32 s52, s43, 1
    s_lshr_b32 s53, s{swave}, 2
    s_add_u32 s52, s52, s53
    s_mul_i32 s52, s52, 5120
    s_add_u32 s52, s52, {GP}
    s_and_b32 s53, s{swave}, 3
    v_lshrrev_b32 v13, 3, v{vLane}
    v_mul_u32_u24 v12, 640, v13
    v_add_u32 v12, s52, v12
    v_and_b32 v11, 7, v{vLane}
    v_lshl_add_u32 v11, v11, 4, v12
    s_lshl_b32 s54, s53, 7
    v_add_u32 v11, s54, v11
    v_bfe_u32 v14, v{vLane}, 2, 1
    v_lshl_add_u32 v12, v14, 4, v12
    s_lshl_b32 s54, s53, 5
    s_add_u32 s54, s54, 512
    v_add_u32 v12, s54, v12
    s_lshl_b32 s52, s43, 10
    s_add_u32 s52, s52, {MO}
    v_and_b32 v14, 3, v{vLane}
    v_lshlrev_b32 v13, 7, v13
    v_lshl_add_u32 v13, v14, 4, v13
    v_add_u32 v13, s52, v13
    v_lshl_add_u32 v15, v14, 2, v13
    """)
    a(f"""
    v_bfe_u32 v40, v{vLane}, 2, 2
    v_and_b32 v41, 3, v{vLane}
    v_lshl_add_u32 v42, v{vG}, 3, v40
    v_lshlrev_b32 v42, 8, v42
    v_and_b32 v43, 1, v{vG}
    v_lshl_add_u32 v43, v43, 2, v40
    v_lshlrev_b32 v43, 1, v43
    v_lshrrev_b32 v44, 1, v41
    s_lshl_b32 s52, s{swave}, 1
    v_add_u32 v44, s52, v44
    v_xor_b32 v44, v44, v43
    v_lshl_add_u32 v42, v44, 4, v42
    v_and_b32 v41, 1, v41
    v_lshl_add_u32 v42, v41, 3, v42
    ds_read_b64_tr_b16 v[52:53], v42 offset:{DOWN_OFF}
    ds_read_b64_tr_b16 v[54:55], v42 offset:{DOWN_OFF + 1024}
    v_bfe_u32 v56, v{vLane}, 3, 2
    v_cmp_eq_u32 s[60:61], 1, v56
    v_cmp_eq_u32 s[62:63], 2, v56
    v_cmp_eq_u32 s[64:65], 3, v56
    v_and_b32 v57, 3, v{vLane}
    v_mul_u32_u24 v57, 80, v57
    v_lshl_add_u32 v57, v56, 1, v57
    s_lshl_b32 s52, s{swave}, 3
    s_add_u32 s52, s52, {GL}
    v_add_u32 v57, s52, v57
    v_min_u32 v58, 3, v{vCol}
    v_mul_u32_u24 v58, 80, v58
    v_lshl_add_u32 v58, v{vG}, 4, v58
    v_add_u32 v58, {GL}, v58
    ; DP + (m*56 + f)*2048 + (4w+g)*64 + b*16
    s_mul_i32 s52, s40, 56
    s_add_u32 s52, s52, s43
    s_lshl_b32 s52, s52, 11
    s_lshl_b32 s53, s{swave}, 8
    s_add_u32 s52, s52, s53
    s_add_u32 s52, s52, {DP}
    v_lshlrev_b32 v59, 4, v{vCol}
    v_lshl_add_u32 v59, v{vG}, 6, v59
    v_add_u32 v59, s52, v59
    v_mov_b32 v64, 0
    v_mov_b32 v65, 0
    v_mov_b32 v66, 0
    v_mov_b32 v67, 0
    """)
    L = a.lab('gg')
    if opt.get('gpre', 0): a(f"s_sleep {opt['gpre']}")
    a(f"""
    {L}:
    global_load_dwordx4 v[16:19], v11, s[{sWS}:{sWS + 1}] {LD}
    global_load_dwordx4 v[20:23], v12, s[{sWS}:{sWS + 1}] {LD}
    global_load_dword v24, v13, s[{sWS}:{sWS + 1}] offset:64 {LD}
    global_load_dword v25, v15, s[{sWS}:{sWS + 1}] {LD}
    s_waitcnt vmcnt(0)
    """)
    tagcheck(list(range(16, 26)), L, opt.get('gsleep', 0))
    a.stamp('gB3')
    rs = list(range(16, 26))
    ror_add(rs, 8)
    multi(ADD16, rs, range(26, 36))
    multi(ADD32, rs, range(26, 36))
    a(f"""
    v_mul_f32 v24, {1.0 / 512}, v24
    v_mul_f32 v25, {1.0 / 512}, v25
    v_fma_f32 v25, -v24, v24, v25
    v_add_f32 v25, 0x{f2u(1e-5):08x}, v25
    v_rsq_f32 v25, v25
    """)
    for e in range(4): a(f'v_fma_f32 v{16 + e}, -v24, v{20 + e}, v{16 + e}')
    a(f"""
    v_cndmask_b32 v16, v16, v17, s[60:61]
    v_cndmask_b32 v16, v16, v18, s[62:63]
    v_cndmask_b32 v16, v16, v19, s[64:65]
    v_mul_f32 v16, v16, v25
    v_mov_b32_dpp v17, v16 row_half_mirror row_mask:0xf bank_mask:0xf
    v_mov_b32_dpp v17, v17 quad_perm:[3,2,1,0] row_mask:0xf bank_mask:0xf
    v_mul_f32 v18, v16, v16
    v_mov_b32 v19, 0x{f2u(GA):08x}
    v_fmac_f32 v19, 0x{f2u(GB):08x}, v18
    v_mul_f32 v19, v19, v16
    v_exp_f32 v19, v19
    v_add_f32 v19, 1.0, v19
    v_rcp_f32 v19, v19
    v_mul_f32 v19, v19, v16
    v_mul_f32 v19, v19, v17
    v_cvt_pk_bf16_f32 v19, v19, v19
    v_and_b32 v21, 0x24, v{vLane}
    v_cmp_eq_u32 vcc, 0, v21
    s_and_saveexec_b64 s[36:37], vcc
    ds_write_b16 v57, v19
    s_mov_b64 exec, s[36:37]
    s_waitcnt lgkmcnt(0)
    """)
    a.stamp('preB3')
    a('s_barrier')
    a.stamp('B3')
    a(f"""
    ds_read_b128 v[32:35], v58
    s_waitcnt lgkmcnt(0)
    v_mfma_f32_16x16x32_bf16 v[64:67], v[52:55], v[32:35], v[64:67]
    """)
    tagput(range(64, 68))
    a(f"""
    v_cmp_gt_u32 vcc, 4, v{vCol}
    s_and_saveexec_b64 s[36:37], vcc
    global_store_dwordx4 v59, v[64:67], s[{sWS}:{sWS + 1}] {ST_D}
    s_mov_b64 exec, s[36:37]
    """)
    a.stamp('dpub')
    a('s_branch L_fin')
    a(f"""
    L_final:
    s_cmp_ge_u32 s{swave}, 4
    s_cbranch_scc1 L_fin
    s_sub_u32 s41, s{sy}, 28
    s_lshl_b32 s41, s41, 2
    s_add_u32 s41, s41, s{swave}
    s_lshl_b32 s42, s{sx}, 10
    s_lshl_b32 s43, s41, 6
    s_add_u32 s42, s42, s43
    s_add_u32 s42, s42, {QP}
    s_lshl_b32 s43, s{sx}, 4
    s_add_u32 s41, s41, s43
    v_lshrrev_b32 v11, 2, v{vLane}
    v_and_b32 v12, 3, v{vLane}
    v_lshlrev_b32 v13, 13, v11
    v_lshl_add_u32 v13, v12, 4, v13
    v_add_u32 v13, s42, v13
    v_add_u32 v14, 0x20000, v13
    s_lshl_b32 s43, s41, 3
    s_add_u32 s43, s43, {XL}
    v_lshlrev_b32 v15, 10, v12
    v_add_u32 v15, s43, v15
    ds_read_b64 v[40:41], v15
    """)
    L = a.lab('gh')
    if opt.get('hpre', 0): a(f"s_sleep {opt['hpre']}")
    a(f"""
    {L}:
    global_load_dwordx4 v[16:19], v13, s[{sWS}:{sWS + 1}] {LD}
    global_load_dwordx4 v[20:23], v14, s[{sWS}:{sWS + 1}] {LD}
    s_waitcnt vmcnt(0)
    """)
    tagcheck(list(range(16, 24)), L, opt.get('hsleep', 0))
    a.stamp('gH')
    for e in range(4): a(f'v_add_f32 v{44 + e}, v{16 + e}, v{20 + e}')
    a(f"""
    s_lshr_b32 s42, s41, 5
    s_mul_i32 s42, s42, {56 * 2048}
    s_and_b32 s43, s41, 31
    s_lshl_b32 s43, s43, 6
    s_add_u32 s42, s42, s43
    s_add_u32 s42, s42, {DP}
    v_lshlrev_b32 v13, 11, v11
    v_lshl_add_u32 v13, v12, 4, v13
    v_add_u32 v13, s42, v13
    v_add_u32 v14, 0x8000, v13
    v_add_u32 v15, 0x10000, v13
    v_add_u32 v32, 0x18000, v13
    v_cmp_gt_u32 s[60:61], 32, v{vLane}
    v_cndmask_b32 v32, v13, v32, s[60:61]
    v_cndmask_b32 v33, 0, 1.0, s[60:61]
    """)
    L = a.lab('gd')
    if opt.get('cpre', 0): a(f"s_sleep {opt['cpre']}")
    a(f"""
    {L}:
    global_load_dwordx4 v[16:19], v13, s[{sWS}:{sWS + 1}] {LD}
    global_load_dwordx4 v[20:23], v14, s[{sWS}:{sWS + 1}] {LD}
    global_load_dwordx4 v[24:27], v15, s[{sWS}:{sWS + 1}] {LD}
    global_load_dwordx4 v[28:31], v32, s[{sWS}:{sWS + 1}] {LD}
    s_waitcnt vmcnt(0)
    """)
    tagcheck(list(range(16, 32)), L, opt.get('csleep', 0))
    a.stamp('gC')
    for e in range(4): a(f'v_add_f32 v{44 + e}, v{44 + e}, v{16 + e}')
    for e in range(4): a(f'v_add_f32 v{20 + e}, v{20 + e}, v{24 + e}')
    for e in range(4): a(f'v_fmac_f32 v{44 + e}, v33, v{28 + e}')
    for e in range(4): a(f'v_add_f32 v{44 + e}, v{44 + e}, v{20 + e}')
    rs = list(range(44, 48))
    ror_add(rs, 4); ror_add(rs, 8)
    multi(ADD16, rs, range(48, 52))
    multi(ADD32, rs, range(48, 52))
    a(f"""
    s_waitcnt lgkmcnt(0)
    v_lshlrev_b32 v48, 16, v40
    v_and_b32 v49, 0xffff0000, v40
    v_lshlrev_b32 v50, 16, v41
    v_and_b32 v51, 0xffff0000, v41
    """)
    for e in range(4): a(f'v_add_f32 v{44 + e}, v{44 + e}, v{48 + e}')
    a(f"""
    v_cvt_pk_bf16_f32 v44, v44, v45
    v_cvt_pk_bf16_f32 v45, v46, v47
    s_lshl_b32 s42, s41, 3
    v_lshlrev_b32 v15, 10, v12
    v_add_u32 v15, s42, v15
    v_cmp_gt_u32 vcc, 4, v{vLane}
    s_and_saveexec_b64 s[36:37], vcc
    global_store_dwordx2 v15, v[44:45], s[{sOUT}:{sOUT + 1}]
    s_mov_b64 exec, s[36:37]
    s_cmp_eq_u32 s41, 0
    s_cbranch_scc0 L_fin
    v_mov_b32 v16, 0
    v_mov_b32 v17, s{sep}
    s_mov_b64 exec, 1
    global_store_dword v16, v17, s[{sWS}:{sWS + 1}] sc1
    s_mov_b64 exec, -1
    L_fin:
    """)
    if opt.get('stamps') and not opt.get('dbgtime'):
        a(f'''
        s_memrealtime s[100:101]
        s_waitcnt lgkmcnt(0)
        s_lshl_b32 s36, s2, 3
        s_add_u32 s36, s36, s{swave}
        s_lshl_b32 s36, s36, 7
        s_add_u32 s36, s36, {STAMP}
        v_mov_b32 v16, s36
        ''')
        for i in range(15):
            a(f'v_mov_b32 v18, s{72 + 2 * i}\nv_mov_b32 v19, s{73 + 2 * i}\nglobal_store_dwordx2 v16, v[18:19], s[{sWS}:{sWS + 1}] offset:{8 * i}\ns_nop 1')
        a(f'v_mov_b32 v18, s66\nv_mov_b32 v19, 0\nglobal_store_dwordx2 v16, v[18:19], s[{sWS}:{sWS + 1}] offset:120')
    if opt.get('dbgtime'):
        a(f'''
        s_memrealtime s[100:101]
        s_waitcnt lgkmcnt(0)
        v_mov_b32 v16, 0
        v_mov_b32 v17, s100
        s_not_b32 s36, s72
        v_mov_b32 v18, s36
        s_mov_b64 exec, 1
        global_atomic_umax v16, v17, s[24:25] sc1
        global_atomic_umax v16, v18, s[24:25] offset:4 sc1
        s_mov_b64 exec, -1
        s_cmp_eq_u32 s2, {opt.get('dbgwg', 8)}
        s_cbranch_scc0 L_end
        s_cmp_eq_u32 s{swave}, 0
        s_cbranch_scc0 L_end
        ''')
        for i in range(1, 14):
            a(f's_sub_u32 s36, s{72 + 2 * i}, s72\nv_mov_b32 v17, s36\ns_mov_b64 exec, 1\nglobal_store_dword v16, v17, s[24:25] offset:{4 + 4 * i}\ns_mov_b64 exec, -1')
    a('L_end:\ns_endpgm')

    lines, added = hz.fix(a.l)
    hdr = f'''; @launch grid=(256,1,1) block=(512,1,1) lds=163840
; slots: {','.join(opt.get('slots', [])) if opt.get('stamps') else ''}
.amdgcn_target "amdgcn-amd-amdhsa--gfx950"
.text
.globl {KN}
.p2align 8
.type {KN},@function
{KN}:
'''
    ftr = f'''
.section .rodata,"a"
.p2align 6
.amdhsa_kernel {KN}
  .amdhsa_next_free_vgpr 160
  .amdhsa_next_free_sgpr 102
  .amdhsa_accum_offset 160
  .amdhsa_group_segment_fixed_size 0
  .amdhsa_kernarg_size 96
  .amdhsa_user_sgpr_count 2
  .amdhsa_user_sgpr_kernarg_segment_ptr 1
  .amdhsa_system_sgpr_workgroup_id_x 1
.end_amdhsa_kernel
'''
    return hdr + '\n'.join(lines) + '\n' + ftr, added

if __name__ == '__main__':
    import argparse
    p = argparse.ArgumentParser()
    p.add_argument('-o', default='k.s'); p.add_argument('--stamps', action='store_true')
    p.add_argument('--opt', action='append', default=[])
    args = p.parse_args()
    opt = {'stamps': args.stamps}
    opt['slots'] = 'wq,ldrEnd,qgath,Kland,smax,Vland,opub,gA,hpub,gB,gpub,gB3,gC'.split(',')
    for o in args.opt:
        k, v = o.split('=', 1)
        try: v = int(v)
        except ValueError: pass
        opt[k] = v.split(',') if k == 'slots' else v
    assert len(opt['slots']) <= 13
    txt, added = build(opt)
    open(args.o, 'w').write(txt)
    print('wrote', args.o, 'lines', txt.count('\n'), 'nops added', added)
```
